```python
import torch

def _softmax(x, axis=-1):
    return torch.softmax(x, dim=axis)
def _gelu(x):
    return torch.nn.functional.gelu(x, approximate="tanh")
def _silu(x):
    return torch.nn.functional.silu(x)
def _sigmoid(x):
    return torch.sigmoid(x)
def _layernorm(x, axis=-1, eps=1e-5):
    m = x.mean(dim=axis, keepdim=True)
    v = x.var(dim=axis, keepdim=True, unbiased=False)
    return (x - m) / torch.sqrt(v + eps)
def _scatter_add(tgt, idx, src, axis=0):
    return tgt.clone().index_add_(axis, idx, src)
def _segment_sum(src, seg, n):
    out = torch.zeros((n,) + src.shape[1:], dtype=src.dtype)
    return out.index_add_(0, seg, src)
def _pad(x, pw):
    flat = tuple(v for pair in reversed(pw) for v in pair)
    return torch.nn.functional.pad(x, flat)

kernel_name = 'sequential_preLN__grouped_kv_mqa__glu_gated_reglu__prompt'

def setup_inputs():

    _w = (lambda a: (lambda t: t.to(torch.bfloat16) if t.is_floating_point() else t)(torch.as_tensor(a)))
    def _A_setup():
        B, S, D, H = 1, 2048, 512, 32
        Dh = D // H
        return {
            "x": _w((lambda *s: torch.randn(*s, dtype=torch.bfloat16) * 0.05)(B, S, D)),
            "wq": _w((lambda *s: torch.randn(*s, dtype=torch.bfloat16) * 0.05)(D, H * Dh)),
            "wk": _w((lambda *s: torch.randn(*s, dtype=torch.bfloat16) * 0.05)(D, Dh)),
            "wv": _w((lambda *s: torch.randn(*s, dtype=torch.bfloat16) * 0.05)(D, Dh)),
            "wo": _w((lambda *s: torch.randn(*s, dtype=torch.bfloat16) * 0.05)(H * Dh, D)),
        }
    _A_in = _A_setup()

    def _B_setup():
        B, S, D, F = 1, 2048, 512, 1792
        return {
            "x": _w((lambda *s: torch.randn(*s, dtype=torch.bfloat16) * 0.05)(B, S, D)),
            "W_gate": _w((lambda *s: torch.randn(*s, dtype=torch.bfloat16) * 0.4)(D, F) * (2.0 / D) ** 0.5),
            "W_up": _w((lambda *s: torch.randn(*s, dtype=torch.bfloat16) * 0.4)(D, F) * (2.0 / D) ** 0.5),
            "W_down": _w((lambda *s: torch.randn(*s, dtype=torch.bfloat16) * 0.4)(F, D) * (1.0 / F) ** 0.5),
        }
    _B_in = _B_setup()

    return {
        "A_x": _A_in["x"],
        "A_wq": _A_in["wq"],
        "A_wk": _A_in["wk"],
        "A_wv": _A_in["wv"],
        "A_wo": _A_in["wo"],
        "B_x": _B_in["x"],
        "B_W_gate": _B_in["W_gate"],
        "B_W_up": _B_in["W_up"],
        "B_W_down": _B_in["W_down"],
    }

def reference(A_x, A_wq, A_wk, A_wv, A_wo, B_x, B_W_gate, B_W_up, B_W_down):
    def _A_ref(x, wq, wk, wv, wo):
        B, S, D = x.shape
        H = 32
        Dh = D // H
        q = (lambda x, *d: x.permute(*d))((x @ wq).reshape(B, S, H, Dh), 0, 2, 1, 3)
        k = x @ wk
        v = x @ wv
        scores = torch.einsum("bhqd,bkd->bhqk", q, k) * (Dh ** -0.5)
        p = _softmax(scores, axis=-1)
        o = torch.einsum("bhqk,bkd->bhqd", p, v)
        return (lambda x, *d: x.permute(*d))(o, 0, 2, 1, 3).reshape(B, S, H * Dh) @ wo

    def _B_ref(x, W_gate, W_up, W_down):
        gate = torch.einsum("bsd,df->bsf", x, W_gate)
        up = torch.einsum("bsd,df->bsf", x, W_up)
        gate = gate * (lambda x, dt: x.to(dt))(gate > 0, gate.dtype)
        h = gate * up
        return torch.einsum("bsf,fd->bsd", h, W_down)

    x = A_x
    h = x + _A_ref(_layernorm(x, axis=-1), A_wq, A_wk, A_wv, A_wo)
    h2 = h + _B_ref(_layernorm(h, axis=-1), B_W_gate, B_W_up, B_W_down)
    return h2
```

```python
import struct
class Asm:
    def __init__(self):
        self.lines = []
        self.uid = 0
    def __call__(self, s=''):
        for l in s.split('\n'):
            self.lines.append(l)
    def e(self, s):
        self.lines.append('    ' + s)
    def label(self, name):
        self.lines.append(name + ':')
    def newlabel(self, base):
        self.uid += 1
        return f'L_{base}_{self.uid}'
    def text(self):
        return '\n'.join(self.lines) + '\n'
def f32bits(x):
    return struct.unpack('<I', struct.pack('<f', x))[0]
def vr(a, n=1):
    return f'v{a}' if n == 1 else f'v[{a}:{a+n-1}]'
def ar(a, n=1):
    return f'a{a}' if n == 1 else f'a[{a}:{a+n-1}]'
def sr(a, n=1):
    return f's{a}' if n == 1 else f's[{a}:{a+n-1}]'
def kernel_header(a, name):
    a(f'.globl {name}')
    a('.p2align 8')
    a(f'.type {name},@function')
    a.label(name)
def kernel_desc(name, nvgpr, nsgpr, accum=None, extra=''):
    if accum is None:
        accum = (nvgpr + 3) // 4 * 4
    return f""".p2align 6
.amdhsa_kernel {name}
  .amdhsa_next_free_vgpr {nvgpr}
  .amdhsa_next_free_sgpr {nsgpr}
  .amdhsa_accum_offset {accum}
  .amdhsa_group_segment_fixed_size 0
  .amdhsa_kernarg_size 96
  .amdhsa_user_sgpr_count 2
  .amdhsa_user_sgpr_kernarg_segment_ptr 1
  .amdhsa_system_sgpr_workgroup_id_x 1
  .amdhsa_float_denorm_mode_32 3
{extra}.end_amdhsa_kernel
"""
```

```python
from asmlib import *
from layout import *

KA_X, KA_WQ, KA_WK, KA_WV, KA_WO, KA_BX, KA_WG, KA_WU, KA_WD, KA_OUT, KA_DBG, KA_WS = [8*i for i in range(12)]

def srd(a, dst, lo, hi, nbytes, add=0):
    if add:
        a.e(f's_add_u32 s{dst}, s{lo}, {add}')
        a.e(f's_addc_u32 s{dst+1}, s{hi}, 0')
        a.e(f's_and_b32 s{dst+1}, s{dst+1}, 0xffff')
    else:
        a.e(f's_mov_b32 s{dst}, s{lo}')
        a.e(f's_and_b32 s{dst+1}, s{hi}, 0xffff')
    a.e(f's_mov_b32 s{dst+2}, {nbytes}')
    a.e(f's_mov_b32 s{dst+3}, 0x00020000')

def red_g(a, x, tmp):
    a.e(f'v_mov_b32 v{tmp}, v{x}')
    a.e('s_nop 1')
    a.e(f'v_permlane32_swap_b32 v{x}, v{tmp}')
    a.e('s_nop 0')
    a.e(f'v_add_f32 v{x}, v{x}, v{tmp}')
    a.e(f'v_mov_b32 v{tmp}, v{x}')
    a.e('s_nop 1')
    a.e(f'v_permlane16_swap_b32 v{x}, v{tmp}')
    a.e('s_nop 0')
    a.e(f'v_add_f32 v{x}, v{x}, v{tmp}')

def red_g_multi(a, xs, tmps, op='v_add_f32'):
    for x, t in zip(xs, tmps): a.e(f'v_mov_b32 v{t}, v{x}')
    a.e('s_nop 1')
    for x, t in zip(xs, tmps): a.e(f'v_permlane32_swap_b32 v{x}, v{t}')
    a.e('s_nop 1')
    for x, t in zip(xs, tmps): a.e(f'{op} v{x}, v{x}, v{t}')
    a.e('s_nop 0')
    for x, t in zip(xs, tmps): a.e(f'v_mov_b32 v{t}, v{x}')
    a.e('s_nop 1')
    for x, t in zip(xs, tmps): a.e(f'v_permlane16_swap_b32 v{x}, v{t}')
    a.e('s_nop 1')
    for x, t in zip(xs, tmps): a.e(f'{op} v{x}, v{x}, v{t}')

def wave_ids(a, swave=16, vlane=1, vtmp=2):
    a.e(f'v_lshrrev_b32 v{vtmp}, 6, v0')
    a.e(f'v_and_b32 v{vlane}, 63, v0')
    a.e('s_nop 0')
    a.e(f'v_readfirstlane_b32 s{swave}, v{vtmp}')

def map_tb_hg(a, stb, shg, stmp):
    a.e(f's_and_b32 s{stb}, s2, 7')
    a.e(f's_lshr_b32 s{shg}, s2, 3')
    a.e(f's_lshr_b32 s{stmp}, s{shg}, 3')
    a.e(f's_lshl_b32 s{stb}, s{stb}, 2')
    a.e(f's_add_u32 s{stb}, s{stb}, s{stmp}')
    a.e(f's_and_b32 s{shg}, s{shg}, 7')

class Diag:
    def __init__(self, a, on, kidx, sbase=60):
        self.a, self.on, self.kidx, self.sb, self.n = a, on, kidx, sbase, 0
    def start(self):
        if not self.on: return
        self.a.e(f's_memrealtime s[{self.sb}:{self.sb+1}]')
        self.stamp()
    def stamp(self):
        if not self.on: return
        r = self.sb + 4 + 2 * self.n
        self.a.e(f's_memtime s[{r}:{r+1}]')
        self.n += 1
    def finish(self, vtmp, swave=16, srd_ws=8, nw=8):
        if not self.on: return
        a = self.a
        self.stamp()
        a.e(f's_memrealtime s[{self.sb+2}:{self.sb+3}]')
        a.e('s_waitcnt lgkmcnt(0)')
        a.e(f'v_mov_b32 v{vtmp}, s{self.sb}')
        a.e(f'v_mov_b32 v{vtmp+1}, s{self.sb+2}')
        a.e(f'v_mov_b32 v{vtmp+2}, {self.n}')
        a.e(f'v_mov_b32 v{vtmp+3}, 0')
        for i in range(12):
            if i < self.n: a.e(f'v_mov_b32 v{vtmp+4+i}, s{self.sb+4+2*i}')
            else: a.e(f'v_mov_b32 v{vtmp+4+i}, 0')
        a.e(f's_lshl_b32 s{self.sb}, s2, 4')
        a.e(f's_add_u32 s{self.sb}, s{self.sb}, s{swave}')
        a.e(f's_lshl_b32 s{self.sb}, s{self.sb}, 6')
        a.e(f's_add_u32 s{self.sb}, s{self.sb}, {WS_DBG + self.kidx * 512 * 1024}')
        a.e(f'v_mov_b32 v{vtmp+16}, 0')
        a.e(f's_mov_b64 s[{self.sb+2}:{self.sb+3}], exec')
        a.e('s_mov_b64 exec, 1')
        for i in range(4):
            a.e(f'buffer_store_dwordx4 v[{vtmp+4*i}:{vtmp+4*i+3}], v{vtmp+16}, s[{srd_ws}:{srd_ws+3}], s{self.sb} offen offset:{16*i}')
        a.e(f's_mov_b64 exec, s[{self.sb+2}:{self.sb+3}]')
```

```python
from common import *

def gen_gemm64(a, kind, diag=False, name=None, kidx=2):
    name = name or f'{kind}_kernel'
    a.cur = name
    dg = Diag(a, diag, kidx)
    NKS = {'wo': 4, 'down': 14}[kind]
    TKS = NKS * 8
    WA = {'wo': WS_WO, 'down': WS_WD}[kind]
    WB = {'wo': WS_O, 'down': WS_ACT}[kind]
    kernel_header(a, name)
    a.e('s_cmp_ge_u32 s2, 256')
    a.e(f's_cbranch_scc1 L_exit_{name}')
    a.e(f's_load_dwordx2 s[4:5], s[0:1], {KA_WS}')
    a.e(f's_load_dwordx2 s[6:7], s[0:1], {KA_X if kind == "wo" else KA_OUT}')
    dg.start()
    wave_ids(a)
    map_tb_hg(a, 17, 18, 19)
    a.e('v_lshlrev_b32 v2, 4, v1')
    a.e(f's_mul_i32 s20, s18, {2*TKS}')
    a.e(f's_mul_i32 s21, s16, {NKS}')
    a.e('s_add_u32 s20, s20, s21')
    a.e('s_lshl_b32 s20, s20, 10')
    a.e(f's_add_u32 s20, s20, {WA}')
    a.e(f's_add_u32 s22, s20, {TKS*1024}')
    a.e(f's_mul_i32 s23, s17, {2*TKS}')
    a.e('s_add_u32 s23, s23, s21')
    a.e('s_lshl_b32 s23, s23, 10')
    a.e(f's_add_u32 s23, s23, {WB}')
    a.e(f's_add_u32 s24, s23, {TKS*1024}')
    a.e('v_lshrrev_b32 v3, 3, v1')
    a.e('v_and_b32 v4, 7, v1')
    a.e('s_lshl_b32 s25, s17, 6')
    a.e('s_lshl_b32 s26, s16, 3')
    a.e('s_add_u32 s25, s25, s26')
    a.e('v_add_u32 v5, s25, v4')
    a.e('v_lshlrev_b32 v6, 10, v5')
    a.e('v_lshl_add_u32 v6, v3, 4, v6')
    a.e('s_lshl_b32 s26, s18, 7')
    a.e('v_add_u32 v6, s26, v6')
    a.e('v_lshrrev_b32 v7, 4, v5')
    a.e('v_lshlrev_b32 v7, 14, v7')
    a.e('v_lshrrev_b32 v8, 2, v3')
    a.e('v_lshl_add_u32 v7, v8, 10, v7')
    a.e('v_and_b32 v8, 3, v3')
    a.e('v_lshlrev_b32 v8, 4, v8')
    a.e('v_and_b32 v9, 15, v5')
    a.e('v_add_u32 v8, v8, v9')
    a.e('v_lshl_add_u32 v7, v8, 4, v7')
    a.e('s_lshl_b32 s26, s18, 11')
    a.e(f's_add_u32 s26, s26, {WS_H}')
    a.e('v_add_u32 v7, s26, v7')
    a.e('s_waitcnt lgkmcnt(0)')
    srd(a, 8, 4, 5, WS_USED)
    srd(a, 12, 6, 7, S*D*2)
    RES = 12
    if kind == 'wo':
        a.e(f'buffer_load_dwordx4 {vr(RES,4)}, v6, s[12:15], 0 offen')
    else:
        a.e(f'buffer_load_dwordx4 {vr(RES,4)}, v7, s[8:11], 0 offen')
    ACC = 16
    FR = 80
    DEPTH = min(NKS, 7 if kind == 'down' else 4)
    def loads(i):
        s = FR + 16 * (i % DEPTH)
        o = i * 1024
        so = ''
        a.e(f'buffer_load_dwordx4 {vr(s,4)}, v2, s[8:11], s20 offen')
        a.e(f'buffer_load_dwordx4 {vr(s+4,4)}, v2, s[8:11], s22 offen')
        a.e(f'buffer_load_dwordx4 {vr(s+8,4)}, v2, s[8:11], s23 offen')
        a.e(f'buffer_load_dwordx4 {vr(s+12,4)}, v2, s[8:11], s24 offen')
        for r in (20, 22, 23, 24):
            a.e(f's_add_u32 s{r}, s{r}, 1024')
    for i in range(DEPTH):
        loads(i)
    for r in range(ACC, ACC+64):
        a.e(f'v_mov_b32 v{r}, 0')
    dg.stamp()
    issued = DEPTH
    for i in range(NKS):
        a.e(f's_waitcnt vmcnt({(issued - i - 1) * 4})')
        s = FR + 16 * (i % DEPTH)
        for ct in range(2):
            for tt in range(2):
                t = ACC + 16 * (ct*2+tt)
                a.e(f'v_mfma_f32_32x32x16_bf16 {vr(t,16)}, {vr(s+4*ct,4)}, {vr(s+8+4*tt,4)}, {vr(t,16)}')
        if issued < NKS:
            loads(issued); issued += 1
    dg.stamp()
    BS = 1152
    a.e(f's_mul_i32 s26, s16, {16*BS}')
    a.e('v_add_u32 v8, s26, v2')
    a.e('s_nop 7')
    a.e('s_nop 3')
    for t in range(4):
        for m in range(4):
            a.e(f'ds_write_b128 v8, {vr(ACC+16*t+4*m,4)} offset:{(t*4+m)*BS}')
    a.e('s_waitcnt lgkmcnt(0)')
    a.e('s_barrier')
    dg.stamp()
    a.e('v_lshrrev_b32 v8, 2, v3')
    a.e('v_lshlrev_b32 v8, 3, v8')
    a.e('v_and_b32 v9, 3, v3')
    a.e('v_add_u32 v8, v8, v9')
    a.e('s_lshr_b32 s26, s16, 2')
    a.e('s_lshl_b32 s26, s26, 2')
    a.e('v_add_u32 v8, s26, v8')
    a.e(f'v_mul_u32_u24 v8, {BS}, v8')
    a.e('s_and_b32 s26, s16, 3')
    a.e('s_lshl_b32 s26, s26, 3')
    a.e('v_add_u32 v9, s26, v4')
    a.e('v_lshl_add_u32 v8, v9, 4, v8')
    for w in range(8):
        base = w * 16 * BS
        if base + 512 < 65536:
            va, off = 8, base
        else:
            if w == 4: a.e(f'v_add_u32 v9, {4*16*BS}, v8')
            va, off = 9, base - 4*16*BS
        a.e(f'ds_read_b128 {vr(16+8*w,4)}, v{va} offset:{off}')
        a.e(f'ds_read_b128 {vr(20+8*w,4)}, v{va} offset:{off+512}')
        if w == 3: pass
    for w in range(1, 8):
        a.e(f's_waitcnt lgkmcnt({max(0, 14 - 2*w)})')
        for r in range(8):
            a.e(f'v_add_f32 v{16+r}, v{16+r}, v{16+8*w+r}')
    a.e('s_waitcnt vmcnt(0)')
    for r in range(4):
        a.e(f'v_lshlrev_b32 v{80+2*r}, 16, v{RES+r}')
        a.e(f'v_and_b32 v{81+2*r}, 0xffff0000, v{RES+r}')
    for r in range(8):
        a.e(f'v_add_f32 v{16+r}, v{16+r}, v{80+r}')
    for r in range(4):
        a.e(f'v_cvt_pk_bf16_f32 v{24+r}, v{16+2*r}, v{17+2*r}')
    if kind == 'wo':
        a.e('buffer_store_dwordx4 v[24:27], v7, s[8:11], 0 offen')
        a.e('s_mov_b32 s31, 0x3f803f80')
        a.e('v_mov_b32 v28, 0')
        a.e('v_mov_b32 v29, 0')
        for r in range(4):
            a.e(f'v_dot2_f32_bf16 v28, v{24+r}, s31, v28')
            a.e(f'v_dot2_f32_bf16 v29, v{24+r}, v{24+r}, v29')
        a.e('s_nop 2')
        a.e('v_add_f32_dpp v28, v28, v28 row_ror:8 row_mask:0xf bank_mask:0xf')
        a.e('v_add_f32_dpp v29, v29, v29 row_ror:8 row_mask:0xf bank_mask:0xf')
        a.e('s_nop 1')
        red_g_multi(a, [28, 29], [30, 31])
        a.e('v_lshlrev_b32 v8, 6, v5')
        a.e('s_lshl_b32 s26, s18, 3')
        a.e(f's_add_u32 s26, s26, {WS_ST}')
        a.e('s_mov_b64 exec, 0xff')
        a.e('buffer_store_dwordx2 v[28:29], v8, s[8:11], s26 offen')
        a.e('s_mov_b64 exec, -1')
    else:
        a.e('buffer_store_dwordx4 v[24:27], v6, s[12:15], 0 offen')
    dg.finish(200 if diag else 0)
    a.e('s_waitcnt vmcnt(0)')
    a.label(f'L_exit_{name}')
    a.e('s_endpgm')
    nv = FR + 16 * DEPTH
    return name, (232 if diag else nv), 100
G64_LDS = 8 * 16 * 1152
```

```python
from common import *

def gen_k1(a, diag=False, name='qkv_kernel', kidx=0):
    a.cur = name
    dg = Diag(a, diag, kidx)
    kernel_header(a, name)
    a.e('s_cmp_ge_u32 s2, 256')
    a.e(f's_cbranch_scc1 L_exit_{name}')
    a.e(f's_load_dwordx2 s[4:5], s[0:1], {KA_WS}')
    a.e(f's_load_dwordx4 s[32:35], s[0:1], {KA_X}')
    a.e(f's_load_dwordx4 s[36:39], s[0:1], {KA_WK}')
    dg.start()
    wave_ids(a)
    map_tb_hg(a, 17, 18, 19)
    a.e('s_waitcnt lgkmcnt(0)')
    srd(a, 8, 4, 5, WS_USED)
    srd(a, 12, 32, 33, S*D*2)
    srd(a, 20, 34, 35, D*D*2)
    a.e('s_and_b32 s19, s18, 1')
    a.e('s_cmp_eq_u32 s19, 0')
    a.e('s_cselect_b32 s28, s36, s38')
    a.e('s_cselect_b32 s29, s37, s39')
    srd(a, 24, 28, 29, D*DH*2)
    a.e('v_and_b32 v6, 15, v1')
    a.e('v_lshrrev_b32 v7, 4, v1')
    a.e('v_lshlrev_b32 v2, 10, v6')
    a.e('v_lshl_add_u32 v2, v7, 4, v2')
    a.e('s_lshr_b32 s19, s16, 1')
    a.e('s_and_b32 s28, s16, 1')
    a.e('s_lshl_b32 s28, s28, 3')
    a.e('s_lshl_b32 s29, s17, 2')
    a.e('s_add_u32 s29, s29, s19')
    a.e('s_lshl_b32 s29, s29, 14')
    a.e('s_lshl_b32 s30, s28, 6')
    a.e('s_add_u32 s29, s29, s30')
    a.e('s_lshl_b32 s30, s19, 4')
    a.e('s_add_u32 s30, s30, s28')
    a.e('s_lshl_b32 s30, s30, 10')
    for i in range(8):
        a.e('s_mov_b32 m0, s30')
        a.e('s_add_u32 s30, s30, 1024')
        a.e('buffer_load_dwordx4 v2, s[12:15], s29 offen lds')
        a.e('s_add_u32 s29, s29, 64')
    a.e('v_lshrrev_b32 v8, 3, v1')
    a.e('v_and_b32 v9, 7, v1')
    a.e('v_lshrrev_b32 v10, 1, v9')
    a.e('v_bfe_u32 v11, v1, 4, 1')
    a.e('v_xor_b32 v10, v10, v11')
    a.e('v_xor_b32 v11, 2, v10')
    a.e('v_and_b32 v9, 1, v9')
    a.e('v_lshl_or_b32 v10, v10, 1, v9')
    a.e('v_lshl_or_b32 v11, v11, 1, v9')
    a.e('v_lshlrev_b32 v8, 10, v8')
    a.e('v_lshl_add_u32 v3, v10, 4, v8')
    a.e('v_lshl_add_u32 v4, v11, 4, v8')
    a.e('s_lshl_b32 s29, s16, 16')
    a.e('s_lshl_b32 s30, s18, 7')
    a.e('s_add_u32 s29, s29, s30')
    a.e('s_lshl_b32 s30, s16, 13')
    a.e('s_add_u32 s30, s30, 65536')
    for i in range(8):
        a.e('s_mov_b32 m0, s30')
        a.e('s_add_u32 s30, s30, 1024')
        a.e(f'buffer_load_dwordx4 v{3 + (i & 1)}, s[20:23], s29 offen lds')
        a.e('s_add_u32 s29, s29, 8192')
    a.e('v_lshlrev_b32 v5, 8, v7')
    a.e('v_lshl_add_u32 v5, v6, 1, v5')
    a.e('s_lshl_b32 s29, s16, 11')
    for i in range(2):
        for j in range(8):
            a.e(f'buffer_load_ushort v{16+i*8+j}, v5, s[24:27], s29 offen offset:{i*1024+j*32}')
    FG, KH = 40, 41
    a.e(f's_and_b32 s{FG}, s16, 3')
    a.e(f's_lshr_b32 s{KH}, s16, 2')
    VTR, VB, VS = 12, 13, 14
    a.e('v_lshrrev_b32 v8, 2, v6')
    a.e('v_and_b32 v9, 3, v1')
    a.e('v_lshrrev_b32 v10, 1, v8')
    a.e('v_and_b32 v11, 1, v7')
    a.e('v_lshl_or_b32 v10, v11, 1, v10')
    a.e(f'v_xor_b32 v10, s{FG}, v10')
    a.e('v_lshl_add_u32 v8, v7, 3, v8')
    a.e('v_lshlrev_b32 v8, 7, v8')
    a.e('v_lshl_add_u32 v8, v10, 5, v8')
    a.e('v_lshl_add_u32 v8, v9, 3, v8')
    a.e(f's_lshl_b32 s28, s{KH}, 15')
    a.e('s_add_u32 s28, s28, 65536')
    a.e(f'v_add_u32 v{VTR}, s28, v8')
    a.e('v_lshlrev_b32 v8, 4, v1')
    a.e(f's_lshl_b32 s28, s{KH}, 13')
    a.e(f'v_add_u32 v{VB}, s28, v8')
    a.e(f's_lshl_b32 s29, s{FG}, 14')
    a.e(f'v_add_u32 v{VS}, s29, v{VB}')
    VKB = 15
    a.e('s_lshr_b32 s28, s18, 1')
    a.e('s_lshl_b32 s28, s28, 14')
    a.e('s_lshl_b32 s29, s16, 11')
    a.e('s_add_u32 s28, s28, s29')
    a.e(f'v_add_u32 v{VKB}, s28, v8')
    AF = [40, 44]; BF = [48, 68]
    ACC = 88; SUM, SSQ, CS, KCS = 104, 105, 106, 107
    KACC = 108; KB = 112
    a.e('s_mov_b32 s31, 0x3f803f80')
    for r in range(ACC, 112):
        a.e(f'v_mov_b32 v{r}, 0')
    a.e('s_waitcnt vmcnt(0)')
    for i in range(2):
        for r in range(4):
            a.e(f'v_lshl_or_b32 v{32+i*4+r}, v{16+i*8+2*r+1}, 16, v{16+i*8+2*r}')
    a.e('s_barrier')
    dg.stamp()
    def reads(i):
        s = i & 1
        a.e(f'ds_read_b64_tr_b16 {vr(AF[s],2)}, v{VTR} offset:{i*4096}')
        a.e(f'ds_read_b64_tr_b16 {vr(AF[s]+2,2)}, v{VTR} offset:{i*4096+512}')
        for tg in range(4):
            a.e(f'ds_read_b128 {vr(BF[s]+4*tg,4)}, v{VB} offset:{tg*16384+i*1024}')
        a.e(f'ds_read_b128 {vr(BF[s]+16,4)}, v{VS} offset:{i*1024}')
    a.e(f'ds_read_b128 {vr(KB,4)}, v{VKB} offset:0')
    a.e(f'ds_read_b128 {vr(KB+4,4)}, v{VKB} offset:1024')
    reads(0)
    for i in range(8):
        s = i & 1
        if i < 7:
            reads(i + 1)
            a.e('s_waitcnt lgkmcnt(7)')
        else:
            a.e('s_waitcnt lgkmcnt(0)')
        for tg in range(4):
            a.e(f'v_mfma_f32_16x16x32_bf16 {vr(ACC+4*tg,4)}, {vr(AF[s],4)}, {vr(BF[s]+4*tg,4)}, {vr(ACC+4*tg,4)}')
        if i < 2:
            a.e(f'v_mfma_f32_16x16x32_bf16 {vr(KACC,4)}, {vr(32+4*i,4)}, {vr(KB+4*i,4)}, {vr(KACC,4)}')
            for r in range(4):
                a.e(f'v_dot2_f32_bf16 v{KCS}, v{32+4*i+r}, s31, v{KCS}')
        for r in range(4):
            a.e(f'v_dot2_f32_bf16 v{SUM}, v{BF[s]+16+r}, s31, v{SUM}')
            a.e(f'v_dot2_f32_bf16 v{SSQ}, v{BF[s]+16+r}, v{BF[s]+16+r}, v{SSQ}')
            a.e(f'v_dot2_f32_bf16 v{CS}, v{AF[s]+r}, s31, v{CS}')
    dg.stamp()
    a.e('s_nop 2')
    red_g_multi(a, [SUM, SSQ, CS, KCS], [16, 17, 18, 19])
    a.e('s_barrier')
    ST, CSB, KVP, KCSB = 32768, 33792, 34816, 43008
    a.e('v_lshlrev_b32 v8, 4, v1')
    a.e(f's_lshl_b32 s28, s{FG}, 13')
    a.e(f's_lshl_b32 s29, s{KH}, 12')
    a.e('s_add_u32 s28, s28, s29')
    a.e('v_add_u32 v9, s28, v8')
    for tg in range(4):
        a.e(f'ds_write_b128 v9, {vr(ACC+4*tg,4)} offset:{tg*1024}')
    a.e('s_lshl_b32 s28, s16, 10')
    a.e('v_add_u32 v9, s28, v8')
    a.e(f'ds_write_b128 v9, {vr(KACC,4)} offset:{KVP}')
    a.e(f's_lshl_b32 s28, s{FG}, 1')
    a.e(f's_add_u32 s28, s28, s{KH}')
    a.e('s_lshl_b32 s29, s28, 7')
    a.e('v_lshlrev_b32 v10, 3, v6')
    a.e('v_add_u32 v10, s29, v10')
    a.e('s_lshl_b32 s29, s28, 6')
    a.e('v_lshlrev_b32 v11, 2, v6')
    a.e('v_add_u32 v16, s29, v11')
    a.e('s_lshl_b32 s29, s16, 6')
    a.e('v_add_u32 v17, s29, v11')
    a.e('s_mov_b64 exec, 0xffff')
    a.e(f'ds_write_b64 v10, {vr(SUM,2)} offset:{ST}')
    a.e(f'ds_write_b32 v16, v{CS} offset:{CSB}')
    a.e(f'ds_write_b32 v17, v{KCS} offset:{KCSB}')
    a.e('s_mov_b64 exec, -1')
    a.e('s_waitcnt lgkmcnt(0)')
    a.e('s_barrier')
    dg.stamp()
    a.e(f's_lshl_b32 s28, s{FG}, 13')
    a.e(f's_lshl_b32 s29, s{KH}, 11')
    a.e('s_add_u32 s28, s28, s29')
    a.e('v_add_u32 v9, s28, v8')
    for u in range(2):
        a.e(f'ds_read_b128 {vr(40+8*u,4)}, v9 offset:{u*1024}')
        a.e(f'ds_read_b128 {vr(44+8*u,4)}, v9 offset:{4096+u*1024}')
    a.e(f's_lshl_b32 s29, s{KH}, 9')
    a.e('v_lshlrev_b32 v10, 3, v6')
    a.e('v_add_u32 v10, s29, v10')
    for u in range(2):
        a.e(f'ds_read_b64 {vr(56+4*u,2)}, v10 offset:{ST+u*256}')
        a.e(f'ds_read_b64 {vr(58+4*u,2)}, v10 offset:{ST+u*256+128}')
    a.e(f's_lshl_b32 s29, s{FG}, 7')
    a.e('v_lshlrev_b32 v11, 4, v7')
    a.e('v_add_u32 v11, s29, v11')
    a.e(f'ds_read_b128 {vr(64,4)}, v11 offset:{CSB}')
    a.e(f'ds_read_b128 {vr(68,4)}, v11 offset:{CSB+64}')
    a.e('v_lshrrev_b32 v16, 1, v7')
    a.e('v_lshlrev_b32 v16, 5, v16')
    a.e('v_add_u32 v16, v16, v6')
    a.e('v_lshlrev_b32 v16, 4, v16')
    a.e('v_and_b32 v17, 1, v7')
    a.e('v_lshl_add_u32 v16, v17, 3, v16')
    a.e('s_lshl_b32 s28, s17, 1')
    a.e(f's_add_u32 s28, s28, s{KH}')
    a.e('s_lshl_b32 s28, s28, 5')
    a.e('s_lshl_b32 s29, s18, 2')
    a.e('s_add_u32 s28, s28, s29')
    a.e(f's_add_u32 s28, s28, s{FG}')
    a.e('s_lshl_b32 s28, s28, 10')
    a.e(f's_add_u32 s28, s28, {WS_Q}')
    a.e(f's_mov_b32 s42, {f32bits(1.0/512)}')
    a.e(f's_mov_b32 s43, {f32bits(1e-5)}')
    a.e(f's_mov_b32 s44, {f32bits(QSCALE)}')
    a.e('s_waitcnt lgkmcnt(0)')
    for r in range(4):
        a.e(f'v_add_f32 v{64+r}, v{64+r}, v{68+r}')
    def ln_stats(b, mean, rstd):
        a.e(f'v_add_f32 v{b}, v{b}, v{b+2}')
        a.e(f'v_add_f32 v{b+1}, v{b+1}, v{b+3}')
        a.e(f'v_mul_f32 v{mean}, s42, v{b}')
        a.e(f'v_mul_f32 v{b+1}, s42, v{b+1}')
        a.e(f'v_fma_f32 v{b+1}, -v{mean}, v{mean}, v{b+1}')
        a.e(f'v_max_f32 v{b+1}, 0, v{b+1}')
        a.e(f'v_add_f32 v{b+1}, s43, v{b+1}')
        a.e(f'v_rsq_f32 v{rstd}, v{b+1}')
    for u in range(2):
        ln_stats(56+4*u, 72+u, 74+u)
    a.e('s_nop 0')
    for u in range(2):
        a.e(f'v_mul_f32 v{74+u}, s44, v{74+u}')
        for r in range(4):
            a.e(f'v_add_f32 v{40+8*u+r}, v{40+8*u+r}, v{44+8*u+r}')
            a.e(f'v_fma_f32 v{40+8*u+r}, -v{72+u}, v{64+r}, v{40+8*u+r}')
            a.e(f'v_mul_f32 v{40+8*u+r}, v{40+8*u+r}, v{74+u}')
        a.e(f'v_cvt_pk_bf16_f32 v{76+2*u}, v{40+8*u}, v{41+8*u}')
        a.e(f'v_cvt_pk_bf16_f32 v{77+2*u}, v{42+8*u}, v{43+8*u}')
        a.e(f'buffer_store_dwordx2 {vr(76+2*u,2)}, v16, s[8:11], s28 offen offset:{u*256}')
    a.e('s_cmp_lg_u32 s16, 7')
    a.e(f's_cbranch_scc1 L_done_{name}')
    for w in range(8):
        a.e(f'ds_read_b128 {vr(40+4*w,4)}, v8 offset:{KVP + w*1024}')
    a.e('v_lshlrev_b32 v11, 4, v7')
    for w in range(8):
        a.e(f'ds_read_b128 {vr(80+4*w,4)}, v11 offset:{KCSB + w*64}')
    a.e('s_lshr_b32 s45, s18, 1')
    a.e('s_lshl_b32 s29, s45, 8')
    a.e('v_lshlrev_b32 v10, 3, v6')
    a.e('v_add_u32 v10, s29, v10')
    a.e('s_waitcnt lgkmcnt(8)')
    for w in range(1, 8):
        for r in range(4):
            a.e(f'v_add_f32 v{40+r}, v{40+r}, v{40+4*w+r}')
    a.e(f'ds_read_b64 {vr(56,2)}, v10 offset:{ST}')
    a.e(f'ds_read_b64 {vr(58,2)}, v10 offset:{ST+128}')
    a.e('s_waitcnt lgkmcnt(0)')
    for w in range(1, 8):
        for r in range(4):
            a.e(f'v_add_f32 v{80+r}, v{80+r}, v{80+4*w+r}')
    ln_stats(56, 72, 74)
    a.e('s_nop 0')
    for r in range(4):
        a.e(f'v_fma_f32 v{40+r}, -v72, v{80+r}, v{40+r}')
        a.e(f'v_mul_f32 v{40+r}, v{40+r}, v74')
    a.e('v_cvt_pk_bf16_f32 v76, v40, v41')
    a.e('v_cvt_pk_bf16_f32 v77, v42, v43')
    a.e('s_lshl_b32 s46, s17, 2')
    a.e('s_add_u32 s46, s46, s45')
    a.e('s_lshr_b32 s47, s46, 1')
    a.e(f's_mul_i32 s47, s47, {KV_TILE}')
    a.e(f's_add_u32 s47, s47, {WS_KV}')
    a.e('s_and_b32 s48, s46, 1')
    a.e('s_and_b32 s19, s18, 1')
    a.e('s_cmp_eq_u32 s19, 1')
    a.e(f's_cbranch_scc1 L_v_{name}')
    a.e('s_lshl_b32 s48, s48, 8')
    a.e('s_add_u32 s47, s47, s48')
    a.e('buffer_store_dwordx2 v[76:77], v16, s[8:11], s47 offen')
    a.e('v_mov_b32 v44, 0')
    a.e('v_dot2_f32_bf16 v44, v76, v76, v44')
    a.e('v_dot2_f32_bf16 v44, v77, v77, v44')
    a.e('s_nop 2')
    red_g(a, 44, 45)
    for sh in (8, 4, 2, 1):
        a.e('s_nop 1')
        a.e(f'v_max_f32_dpp v44, v44, v44 row_ror:{sh} row_mask:0xf bank_mask:0xf')
    a.e('s_lshl_b32 s46, s46, 2')
    a.e(f's_add_u32 s46, s46, {WS_KMAX}')
    a.e('v_mov_b32 v45, 0')
    a.e('s_mov_b64 exec, 1')
    a.e('buffer_store_dword v44, v45, s[8:11], s46 offen')
    a.e('s_mov_b64 exec, -1')
    a.e(f's_branch L_done_{name}')
    a.label(f'L_v_{name}')
    a.e('s_mul_i32 s48, s48, 528')
    a.e('s_add_u32 s47, s47, s48')
    a.e('s_add_u32 s47, s47, 1024')
    a.e('v_bfe_u32 v44, v6, 2, 1')
    a.e('v_lshlrev_b32 v44, 8, v44')
    a.e('v_lshl_add_u32 v44, v7, 6, v44')
    a.e('v_and_b32 v45, 3, v6')
    a.e('v_lshrrev_b32 v46, 3, v6')
    a.e('v_lshl_add_u32 v45, v46, 2, v45')
    a.e('v_lshl_add_u32 v44, v45, 1, v44')
    a.e('buffer_store_short v76, v44, s[8:11], s47 offen offset:0')
    a.e('buffer_store_short_d16_hi v76, v44, s[8:11], s47 offen offset:16')
    a.e('buffer_store_short v77, v44, s[8:11], s47 offen offset:32')
    a.e('buffer_store_short_d16_hi v77, v44, s[8:11], s47 offen offset:48')
    for r in range(4):
        a.e(f'v_mov_b32 v{48+r}, 0x3f803f80')
    a.e('v_mov_b32 v45, 0')
    a.e('s_mov_b64 exec, 1')
    a.e('buffer_store_dwordx4 v[48:51], v45, s[8:11], s47 offen offset:512')
    a.e('s_mov_b64 exec, -1')
    a.label(f'L_done_{name}')
    dg.finish(200 if diag else 0)
    a.e('s_waitcnt vmcnt(0)')
    a.label(f'L_exit_{name}')
    a.e('s_endpgm')
    return name, (224 if diag else 128), 100
K1_LDS = 131072

if __name__ == '__main__':
    a = Asm()
    a(f'; @launch kernel=qkv_kernel grid=(256,1,1) block=(512,1,1) lds={K1_LDS}')
    a('.amdgcn_target "amdgcn-amd-amdhsa--gfx950"')
    a('.text')
    n, nv, ns = gen_k1(a, diag=True)
    a('.section .rodata,"a"')
    a(kernel_desc(n, nv, ns))
    open('k1.s', 'w').write(a.text())
```

```python
from common import *

def gen_k2(a, diag=False, name='attn_kernel', kidx=1, prepass=True):
    a.cur = name
    dg = Diag(a, diag, kidx)
    kernel_header(a, name)
    a.e('s_cmp_ge_u32 s2, 256')
    a.e(f's_cbranch_scc1 L_exit_{name}')
    a.e(f's_load_dwordx2 s[4:5], s[0:1], {KA_WS}')
    a.e(f's_load_dwordx2 s[32:33], s[0:1], {KA_WO}')
    a.e(f's_load_dwordx4 s[36:39], s[0:1], {KA_WG}')
    a.e(f's_load_dwordx2 s[34:35], s[0:1], {KA_WD}')
    dg.start()
    wave_ids(a)
    map_tb_hg(a, 17, 18, 19)
    a.e('s_lshl_b32 s17, s17, 1')
    a.e('s_lshr_b32 s19, s16, 2')
    a.e('s_add_u32 s17, s17, s19')
    a.e('s_lshl_b32 s18, s18, 2')
    a.e('s_and_b32 s19, s16, 3')
    a.e('s_add_u32 s18, s18, s19')
    a.e('s_lshl_b32 s17, s17, 5')
    a.e('s_add_u32 s17, s17, s18')
    a.e('s_lshl_b32 s17, s17, 10')
    a.e('v_lshlrev_b32 v2, 4, v1')
    a.e('s_waitcnt lgkmcnt(0)')
    srd(a, 8, 4, 5, WS_USED)
    srd(a, 12, 4, 5, KV_BYTES, add=WS_KV)
    a.e(f's_add_u32 s20, s17, {WS_Q}')
    a.e('buffer_load_dwordx4 v[4:7], v2, s[8:11], s20 offen')
    a.e('s_lshl_b32 s20, s16, 10')
    for i in range(17):
        a.e('s_mov_b32 m0, s20')
        a.e('s_nop 0')
        a.e('buffer_load_dwordx4 v2, s[12:15], s20 offen lds')
        if i < 16:
            a.e('s_add_u32 s20, s20, 8192')
    NPRE = 0
    PR = 96
    if prepass:
        NPRE = 24
        a.e('s_lshl_b32 s44, s2, 3')
        a.e('s_add_u32 s44, s44, s16')
        a.e('v_and_b32 v90, 15, v1')
        a.e('v_lshrrev_b32 v91, 4, v1')
        a.e('v_and_b32 v92, 31, v1')
        a.e('v_lshrrev_b32 v93, 5, v1')
        a.e('s_cmp_ge_u32 s44, 1792')
        a.e(f's_cbranch_scc1 L_prewo_{name}')
        a.e('s_movk_i32 s45, 3584')
        a.e('v_lshlrev_b32 v94, 3, v91')
        a.e('v_mul_lo_u32 v94, v94, s45')
        a.e('v_lshl_add_u32 v94, v90, 1, v94')
        a.e('s_and_b32 s46, s44, 15')
        a.e(f's_mul_i32 s46, s46, {32*3584}')
        a.e('s_lshr_b32 s47, s44, 4')
        a.e('s_lshl_b32 s47, s47, 5')
        a.e('s_add_u32 s46, s46, s47')
        srd(a, 48, 36, 37, D*F*2)
        srd(a, 52, 38, 39, D*F*2)
        for j in range(8):
            a.e(f'buffer_load_ushort v{PR+j}, v94, s[48:51], s46 offen')
            a.e(f'buffer_load_ushort v{PR+8+j}, v94, s[52:55], s46 offen')
            a.e('s_add_u32 s46, s46, 3584')
        a.e(f's_mul_hi_u32 s46, s44, {(2**32 + 111)//112}')
        a.e('s_mul_i32 s47, s46, 112')
        a.e('s_sub_u32 s47, s44, s47')
        a.e('s_lshl_b32 s47, s47, 14')
        a.e('s_lshl_b32 s46, s46, 6')
        a.e('s_add_u32 s46, s46, s47')
        a.e('v_lshlrev_b32 v94, 13, v93')
        a.e('v_lshl_add_u32 v94, v92, 1, v94')
        srd(a, 48, 34, 35, F*D*2)
        for j in range(8):
            a.e(f'buffer_load_ushort v{PR+16+j}, v94, s[48:51], s46 offen')
            a.e('s_add_u32 s46, s46, 1024')
        a.e('s_lshl_b32 s45, s44, 10')
        a.e(f's_add_u32 s46, s45, {WS_WU}')
        a.e(f's_add_u32 s47, s45, {WS_WD}')
        a.e(f's_add_u32 s45, s45, {WS_WG}')
        a.e(f's_branch L_predone_{name}')
        a.label(f'L_prewo_{name}')
        a.e('s_sub_u32 s44, s44, 1792')
        a.e('s_lshl_b32 s44, s44, 1')
        a.e('s_and_b32 s46, s44, 31')
        a.e('s_lshl_b32 s46, s46, 14')
        a.e('s_lshr_b32 s47, s44, 5')
        a.e('s_lshl_b32 s47, s47, 6')
        a.e('s_add_u32 s46, s46, s47')
        a.e('v_lshlrev_b32 v94, 12, v93')
        a.e('v_lshl_add_u32 v94, v92, 1, v94')
        srd(a, 48, 32, 33, D*D*2)
        for fr in range(3):
            base = [0, 16384, 0][fr]
            for j in range(8):
                row = j if j < 4 else 8 + j - 4
                a.e(f's_add_u32 s47, s46, {base + row*1024}')
                a.e(f'buffer_load_ushort v{PR+8*fr+j}, v94, s[48:51], s47 offen')
        a.e('s_lshl_b32 s45, s44, 10')
        a.e(f's_add_u32 s45, s45, {WS_WO}')
        a.e('s_add_u32 s46, s45, 1024')
        a.e('s_mov_b32 s47, s45')
        a.label(f'L_predone_{name}')
    VK, VV = 3, 88
    a.e(f'v_mov_b32 v{VK}, v2')
    a.e('v_and_b32 v89, 31, v1')
    a.e('v_lshrrev_b32 v90, 5, v1')
    a.e('v_lshlrev_b32 v90, 8, v90')
    a.e('v_lshl_add_u32 v90, v89, 4, v90')
    a.e('v_mov_b32 v91, 512')
    a.e('v_cmp_gt_u32 vcc, 16, v89')
    a.e('s_nop 1')
    a.e('v_cndmask_b32 v90, v91, v90, vcc')
    a.e(f'v_add_u32 v{VV}, 1024, v90')
    Q = 4; KR = [8, 12]; VR = [[16, 20], [24, 28]]; P = [32, 36]; SB = [40, 56]; O = 72
    for i in range(16):
        a.e(f'v_mov_b32 v{O+i}, 0')
    for i in range(4):
        a.e(f'v_mov_b32 v{P[1]+i}, 0')
        a.e(f'v_mov_b32 v{VR[1][1]+i}, 0')
    sched = 'E0 E1 PV1 LV1 E2 E3 C0 C1 E4 E5 W1 QK LV0 LK E6 E7 C2 C3 E8 E9 PV0 E10 E11 E12 E13 E14 E15 C4 C5 C6 C7'
    def tile(p, base):
        s_cur, s_nxt = SB[p], SB[1-p]
        o1 = (base+1)*KV_TILE; o2 = (base+2)*KV_TILE
        for op in sched.split():
            if op == 'LV0': a.e(f'ds_read_b128 {vr(VR[1-p][0],4)}, v{VV} offset:{o1}')
            elif op == 'LV1': a.e(f'ds_read_b128 {vr(VR[1-p][1],4)}, v{VV} offset:{o1+528}')
            elif op == 'LK': a.e(f'ds_read_b128 {vr(KR[p],4)}, v{VK} offset:{o2}')
            elif op[0] == 'W': a.e('s_waitcnt lgkmcnt(%s)' % op[1:])
            elif op == 'QK': a.e(f'v_mfma_f32_32x32x16_bf16 {vr(s_nxt,16)}, {vr(KR[1-p],4)}, {vr(Q,4)}, 0')
            elif op[0] == 'E':
                i = int(op[1:]); a.e(f'v_exp_f32 v{s_cur+i}, v{s_cur+i}')
            elif op[0] == 'C':
                i = int(op[1:]); a.e(f'v_cvt_pk_bf16_f32 v{P[i//4] + i % 4}, v{s_cur+2*i}, v{s_cur+2*i+1}')
            elif op == 'PV0': a.e(f'v_mfma_f32_32x32x16_bf16 {vr(O,16)}, {vr(VR[p][0],4)}, {vr(P[0],4)}, {vr(O,16)}')
            elif op == 'PV1': a.e(f'v_mfma_f32_32x32x16_bf16 {vr(O,16)}, {vr(VR[1-p][1],4)}, {vr(P[1],4)}, {vr(O,16)}')
    waits = [12, 8, 4, 0]
    for st in range(4):
        a.e(f's_waitcnt vmcnt({waits[st] + (NPRE if st < 3 else 0)})')
        a.e('s_barrier')
        if st == 0:
            dg.stamp()
            a.e(f'ds_read_b128 {vr(KR[0],4)}, v{VK} offset:0')
            a.e(f'ds_read_b128 {vr(VR[0][0],4)}, v{VV} offset:0')
            a.e(f'ds_read_b128 {vr(VR[0][1],4)}, v{VV} offset:528')
            a.e(f'ds_read_b128 {vr(KR[1],4)}, v{VK} offset:{KV_TILE}')
            a.e('s_waitcnt lgkmcnt(3)')
            a.e(f'v_mfma_f32_32x32x16_bf16 {vr(SB[0],16)}, {vr(KR[0],4)}, {vr(Q,4)}, 0')
            a.e('s_nop 15')
        if st == 3 and prepass:
            for fr in range(3):
                for r in range(4):
                    a.e(f'v_lshl_or_b32 v{120+4*fr+r}, v{PR+8*fr+2*r+1}, 16, v{PR+8*fr+2*r}')
            for fr in range(3):
                a.e(f'buffer_store_dwordx4 {vr(120+4*fr,4)}, v2, s[8:11], s{45+fr} offen')
        for t in range(16):
            tile(t & 1, t)
        a.e(f'v_add_u32 v{VK}, {16*KV_TILE}, v{VK}')
        a.e(f'v_add_u32 v{VV}, {16*KV_TILE}, v{VV}')
    a.e('s_nop 1')
    a.e(f'v_mfma_f32_32x32x16_bf16 {vr(O,16)}, {vr(VR[1][1],4)}, {vr(P[1],4)}, {vr(O,16)}')
    dg.stamp()
    a.e('s_nop 15')
    a.e(f'v_rcp_f32 v{O+8}, v{O+8}')
    a.e('s_nop 0')
    for i in range(8):
        a.e(f'v_mul_f32 v{O+i}, v{O+i}, v{O+8}')
    for i in range(4):
        a.e(f'v_cvt_pk_bf16_f32 v{P[0]+i}, v{O+2*i}, v{O+2*i+1}')
    a.e(f's_add_u32 s20, s17, {WS_O}')
    a.e(f'buffer_store_dwordx4 {vr(P[0],4)}, v2, s[8:11], s20 offen')
    dg.finish(140 if diag else 0)
    a.e('s_waitcnt vmcnt(0)')
    a.label(f'L_exit_{name}')
    a.e('s_endpgm')
    return name, (160 if diag else 132), 100
K2_LDS = 139264
```

```python
from common import *

def gen_k4(a, diag=False, name='gu_kernel', kidx=3):
    a.cur = name
    dg = Diag(a, diag, kidx)
    kernel_header(a, name)
    a.e('s_cmp_ge_u32 s2, 256')
    a.e(f's_cbranch_scc1 L_exit_{name}')
    a.e(f's_load_dwordx2 s[4:5], s[0:1], {KA_WS}')
    dg.start()
    wave_ids(a)
    a.e('s_and_b32 s17, s2, 7')
    a.e('s_lshr_b32 s18, s2, 3')
    a.e('s_lshr_b32 s19, s18, 4')
    a.e('s_lshl_b32 s17, s17, 1')
    a.e('s_add_u32 s17, s17, s19')
    a.e('s_and_b32 s18, s18, 15')
    a.e('v_lshlrev_b32 v2, 4, v1')
    a.e('v_add_u32 v3, 65536, v2')
    a.e('v_and_b32 v6, 15, v1')
    a.e('v_lshrrev_b32 v7, 4, v1')
    a.e('s_mul_i32 s20, s18, 7')
    a.e('s_add_u32 s20, s20, s16')
    a.e('s_lshl_b32 s21, s20, 14')
    a.e(f's_add_u32 s22, s21, {WS_WU}')
    a.e(f's_add_u32 s21, s21, {WS_WG}')
    a.e('s_lshl_b32 s23, s17, 17')
    a.e('s_lshl_b32 s24, s16, 14')
    a.e('s_add_u32 s23, s23, s24')
    a.e(f's_add_u32 s23, s23, {WS_H}')
    a.e(f's_mov_b32 s42, {f32bits(1.0/512)}')
    a.e(f's_mov_b32 s43, {f32bits(1e-5)}')
    a.e('s_waitcnt lgkmcnt(0)')
    srd(a, 8, 4, 5, WS_USED)
    STT = 131072
    a.e('s_cmp_eq_u32 s16, 7')
    a.e(f's_cbranch_scc1 L_w7_{name}')
    A0 = 16
    BF = 144
    ACC = 176
    CSG, CSU = 240, 241
    for ks in range(16):
        a.e('s_mov_b32 m0, s24')
        a.e('s_add_u32 s24, s24, 1024')
        a.e('buffer_load_dwordx4 v2, s[8:11], s23 offen lds')
        a.e('s_add_u32 s23, s23, 1024')
        a.e(f'buffer_load_dwordx4 {vr(A0+8*ks,4)}, v2, s[8:11], s21 offen')
        a.e(f'buffer_load_dwordx4 {vr(A0+8*ks+4,4)}, v2, s[8:11], s22 offen')
        a.e('s_add_u32 s21, s21, 1024')
        a.e('s_add_u32 s22, s22, 1024')
    for r in range(ACC, 242):
        a.e(f'v_mov_b32 v{r}, 0')
    a.e('s_mov_b32 s31, 0x3f803f80')
    dg.stamp()
    def bread(j, ks):
        va = 2 if j < 4 else 3
        a.e(f'ds_read_b128 {vr(BF+4*j,4)}, v{va} offset:{(j%4)*16384 + ks*1024}')
    a.e(f's_waitcnt vmcnt({12*3})')
    a.e('s_barrier')
    dg.stamp()
    for j in range(8):
        bread(j, 0)
    for ks in range(16):
        if ks in (3, 7, 11):
            st = (ks + 1) // 4
            a.e(f's_waitcnt vmcnt({(16 - 4*(st+1)) * 3})')
            a.e('s_barrier')
        for j in range(8):
            a.e(f's_waitcnt lgkmcnt({7 if ks < 15 else 7 - j})')
            a.e(f'v_mfma_f32_16x16x32_bf16 {vr(ACC+4*j,4)}, {vr(A0+8*ks,4)}, {vr(BF+4*j,4)}, {vr(ACC+4*j,4)}')
            a.e(f'v_mfma_f32_16x16x32_bf16 {vr(ACC+32+4*j,4)}, {vr(A0+8*ks+4,4)}, {vr(BF+4*j,4)}, {vr(ACC+32+4*j,4)}')
            a.e(f'v_dot2_f32_bf16 v{CSG if j < 4 else CSU}, v{A0+8*ks+j}, s31, v{CSG if j < 4 else CSU}')
            if ks < 15:
                bread(j, ks + 1)
    dg.stamp()
    a.e('s_nop 2')
    red_g_multi(a, [CSG, CSU], [16, 17])
    a.e('v_lshlrev_b32 v8, 4, v7')
    for r in range(4):
        a.e(f'v_add_u32 v{20+r}, {4*r}, v8')
    for r in range(4):
        a.e(f'ds_bpermute_b32 v{24+r}, v{20+r}, v{CSG}')
        a.e(f'ds_bpermute_b32 v{28+r}, v{20+r}, v{CSU}')
    a.e('v_lshlrev_b32 v9, 3, v6')
    a.e(f'v_add_u32 v9, {STT}, v9')
    for j in range(8):
        a.e(f'ds_read_b64 {vr(32+2*j,2)}, v9 offset:{j*128}')
    a.e('v_lshrrev_b32 v10, 1, v7')
    a.e('v_lshlrev_b32 v10, 5, v10')
    a.e('v_add_u32 v10, v10, v6')
    a.e('v_lshlrev_b32 v10, 4, v10')
    a.e('v_and_b32 v11, 1, v7')
    a.e('v_lshl_add_u32 v10, v11, 3, v10')
    a.e('s_mul_i32 s25, s17, 448')
    a.e('s_add_u32 s25, s25, s20')
    a.e('s_lshl_b32 s25, s25, 10')
    a.e(f's_add_u32 s25, s25, {WS_ACT}')
    a.e('s_waitcnt lgkmcnt(0)')
    for j in range(8):
        mean, r2 = 32 + 2*j, 33 + 2*j
        g0, u0 = ACC + 4*j, ACC + 32 + 4*j
        for r in range(4):
            a.e(f'v_fma_f32 v{g0+r}, -v{mean}, v{24+r}, v{g0+r}')
            a.e(f'v_fma_f32 v{u0+r}, -v{mean}, v{28+r}, v{u0+r}')
        for r in range(4):
            a.e(f'v_max_f32 v{g0+r}, 0, v{g0+r}')
            a.e(f'v_mul_f32 v{u0+r}, v{u0+r}, v{r2}')
        for r in range(4):
            a.e(f'v_mul_f32 v{g0+r}, v{g0+r}, v{u0+r}')
        a.e(f'v_cvt_pk_bf16_f32 v{48+2*j}, v{g0}, v{g0+1}')
        a.e(f'v_cvt_pk_bf16_f32 v{49+2*j}, v{g0+2}, v{g0+3}')
        a.e(f'buffer_store_dwordx2 {vr(48+2*j,2)}, v10, s[8:11], s25 offen offset:{(j&1)*256}')
        if j & 1:
            a.e(f's_add_u32 s25, s25, {112*1024}')
    a.e(f's_branch L_done_{name}')
    a.label(f'L_w7_{name}')
    a.e('s_lshl_b32 s25, s17, 7')
    a.e('v_add_u32 v8, s25, v1')
    a.e('v_lshlrev_b32 v8, 6, v8')
    a.e(f's_mov_b32 s26, {WS_ST}')
    for u in range(2):
        for i in range(4):
            a.e(f'buffer_load_dwordx4 {vr(16+16*u+4*i,4)}, v8, s[8:11], s26 offen offset:{16*i}')
        a.e(f's_add_u32 s26, s26, {64*64}')
    for ks in range(16):
        a.e('s_mov_b32 m0, s24')
        a.e('s_add_u32 s24, s24, 1024')
        a.e('buffer_load_dwordx4 v2, s[8:11], s23 offen lds')
        a.e('s_add_u32 s23, s23, 1024')
    dg.stamp()
    a.e('s_waitcnt vmcnt(12)')
    a.e('s_barrier')
    dg.stamp()
    for u in range(2):
        b = 16 + 16*u
        for i in range(1, 8):
            a.e(f'v_add_f32 v{b}, v{b}, v{b+2*i}')
            a.e(f'v_add_f32 v{b+1}, v{b+1}, v{b+2*i+1}')
        a.e(f'v_mul_f32 v{b}, s42, v{b}')
        a.e(f'v_mul_f32 v{b+1}, s42, v{b+1}')
        a.e(f'v_fma_f32 v{b+1}, -v{b}, v{b}, v{b+1}')
        a.e(f'v_max_f32 v{b+1}, 0, v{b+1}')
        a.e(f'v_add_f32 v{b+1}, s43, v{b+1}')
        a.e(f'v_rcp_f32 v{b+1}, v{b+1}')
    a.e('v_lshlrev_b32 v9, 3, v1')
    a.e(f'v_add_u32 v9, {STT}, v9')
    a.e('s_nop 0')
    a.e('ds_write_b64 v9, v[16:17]')
    a.e('ds_write_b64 v9, v[32:33] offset:512')
    for st in range(1, 4):
        a.e(f's_waitcnt vmcnt({16 - 4*(st+1)}) lgkmcnt(0)')
        a.e('s_barrier')
    dg.stamp()
    a.label(f'L_done_{name}')
    dg.finish(0 if not diag else 60)
    a.e('s_waitcnt vmcnt(0)')
    a.label(f'L_exit_{name}')
    a.e('s_endpgm')
    return name, 244, 100
K4_LDS = 131072 + 1024
```

```python
S = 2048; D = 512; H = 32; DH = 16; F = 1792
KB = 1024; MB = 1024 * 1024
WS_Q   = 0
WS_O   = 2 * MB
WS_H   = 4 * MB
WS_KV  = 6 * MB
KV_TILE = 2080
KV_BYTES = 64 * KV_TILE
WS_KMAX = WS_KV + 192 * KB
WS_ST  = WS_KV + 256 * KB
WS_CSG = WS_KV + 512 * KB
WS_CSU = WS_KV + 640 * KB
WS_WO  = 7 * MB
WS_WG  = 8 * MB
WS_WU  = 10 * MB
WS_WD  = 12 * MB
WS_ACT = 16 * MB
WS_FLAG = 24 * MB
WS_DBG = 25 * MB
WS_USED = 32 * MB
QSCALE = 0.25 * 1.4426950408889634
```

```python
import sys
from common import *
from gen_k1 import gen_k1, K1_LDS
from gen_k2 import gen_k2, K2_LDS
from gen_gemm64 import gen_gemm64, G64_LDS
from gen_k4 import gen_k4, K4_LDS
HEADER = open('sequential_preLN__grouped_kv_mqa__glu_gated_reglu__prompt.s.ref').read().split('; Override launch')[0]
def build(diag, path):
    a = Asm()
    a(HEADER.rstrip('\n'))
    a(f'; @launch kernel=qkv_kernel grid=(256,1,1) block=(512,1,1) lds={K1_LDS}')
    a(f'; @launch kernel=attn_kernel grid=(256,1,1) block=(512,1,1) lds={K2_LDS}')
    a(f'; @launch kernel=wo_kernel grid=(256,1,1) block=(512,1,1) lds={G64_LDS}')
    a(f'; @launch kernel=gu_kernel grid=(256,1,1) block=(512,1,1) lds={K4_LDS}')
    a(f'; @launch kernel=down_kernel grid=(256,1,1) block=(512,1,1) lds={G64_LDS}')
    a('.amdgcn_target "amdgcn-amd-amdhsa--gfx950"')
    a('.text')
    ds = [gen_k1(a, diag, kidx=0), gen_k2(a, diag, kidx=1), gen_gemm64(a, 'wo', diag, kidx=2), gen_k4(a, diag, kidx=3), gen_gemm64(a, 'down', diag, kidx=4)]
    a('.section .rodata,"a"')
    for n, nv, ns in ds:
        a(kernel_desc(n, nv, ns))
    open(path, 'w').write(a.text())
if __name__ == '__main__':
    build(True, 'full_diag.s')
    build(False, 'full.s')
```

```python
from asmlib import *
from layout import *

KA_X, KA_WQ, KA_WK, KA_WV, KA_WO, KA_BX, KA_WG, KA_WU, KA_WD, KA_OUT, KA_DBG, KA_WS = [8*i for i in range(12)]

def srd(a, dst, lo, hi, nbytes, add=0):
    if add:
        a.e(f's_add_u32 s{dst}, s{lo}, {add}')
        a.e(f's_addc_u32 s{dst+1}, s{hi}, 0')
        a.e(f's_and_b32 s{dst+1}, s{dst+1}, 0xffff')
    else:
        a.e(f's_mov_b32 s{dst}, s{lo}')
        a.e(f's_and_b32 s{dst+1}, s{hi}, 0xffff')
    a.e(f's_mov_b32 s{dst+2}, {nbytes}')
    a.e(f's_mov_b32 s{dst+3}, 0x00020000')

def red_g(a, x, tmp):
    a.e(f'v_mov_b32 v{tmp}, v{x}')
    a.e('s_nop 1')
    a.e(f'v_permlane32_swap_b32 v{x}, v{tmp}')
    a.e('s_nop 0')
    a.e(f'v_add_f32 v{x}, v{x}, v{tmp}')
    a.e(f'v_mov_b32 v{tmp}, v{x}')
    a.e('s_nop 1')
    a.e(f'v_permlane16_swap_b32 v{x}, v{tmp}')
    a.e('s_nop 0')
    a.e(f'v_add_f32 v{x}, v{x}, v{tmp}')

def red_g_multi(a, xs, tmps, op='v_add_f32'):
    for x, t in zip(xs, tmps): a.e(f'v_mov_b32 v{t}, v{x}')
    a.e('s_nop 1')
    for x, t in zip(xs, tmps): a.e(f'v_permlane32_swap_b32 v{x}, v{t}')
    a.e('s_nop 1')
    for x, t in zip(xs, tmps): a.e(f'{op} v{x}, v{x}, v{t}')
    a.e('s_nop 0')
    for x, t in zip(xs, tmps): a.e(f'v_mov_b32 v{t}, v{x}')
    a.e('s_nop 1')
    for x, t in zip(xs, tmps): a.e(f'v_permlane16_swap_b32 v{x}, v{t}')
    a.e('s_nop 1')
    for x, t in zip(xs, tmps): a.e(f'{op} v{x}, v{x}, v{t}')

def wave_ids(a, swave=16, vlane=1, vtmp=2):
    a.e(f'v_lshrrev_b32 v{vtmp}, 6, v0')
    a.e(f'v_and_b32 v{vlane}, 63, v0')
    a.e('s_nop 0')
    a.e(f'v_readfirstlane_b32 s{swave}, v{vtmp}')

def map_tb_hg(a, stb, shg, stmp):
    a.e(f's_and_b32 s{stb}, s2, 7')
    a.e(f's_lshr_b32 s{shg}, s2, 3')
    a.e(f's_lshr_b32 s{stmp}, s{shg}, 3')
    a.e(f's_lshl_b32 s{stb}, s{stb}, 2')
    a.e(f's_add_u32 s{stb}, s{stb}, s{stmp}')
    a.e(f's_and_b32 s{shg}, s{shg}, 7')

class Diag:
    def __init__(self, a, on, kidx, sbase=60):
        self.a, self.on, self.kidx, self.sb, self.n = a, on, kidx, sbase, 0
    def start(self):
        if not self.on: return
        self.a.e(f's_memrealtime s[{self.sb}:{self.sb+1}]')
        self.stamp()
    def stamp(self):
        if not self.on: return
        r = self.sb + 4 + 2 * self.n
        self.a.e(f's_memtime s[{r}:{r+1}]')
        self.n += 1
    def finish(self, vtmp, swave=16, srd_ws=8, nw=8):
        if not self.on: return
        a = self.a
        self.stamp()
        a.e(f's_memrealtime s[{self.sb+2}:{self.sb+3}]')
        a.e('s_waitcnt lgkmcnt(0)')
        a.e(f'v_mov_b32 v{vtmp}, s{self.sb}')
        a.e(f'v_mov_b32 v{vtmp+1}, s{self.sb+2}')
        a.e(f'v_mov_b32 v{vtmp+2}, {self.n}')
        a.e(f'v_mov_b32 v{vtmp+3}, 0')
        for i in range(20):
            if i < self.n: a.e(f'v_mov_b32 v{vtmp+4+i}, s{self.sb+4+2*i}')
            else: a.e(f'v_mov_b32 v{vtmp+4+i}, 0')
        a.e(f's_lshl_b32 s{self.sb}, s2, 4')
        a.e(f's_add_u32 s{self.sb}, s{self.sb}, s{swave}')
        a.e(f's_lshl_b32 s{self.sb}, s{self.sb}, 7')
        a.e(f's_add_u32 s{self.sb}, s{self.sb}, {WS_DBG + self.kidx * 1024 * 1024}')
        a.e(f'v_mov_b32 v{vtmp+24}, 0')
        a.e(f's_mov_b64 s[{self.sb+2}:{self.sb+3}], exec')
        a.e('s_mov_b64 exec, 1')
        for i in range(6):
            a.e(f'buffer_store_dwordx4 v[{vtmp+4*i}:{vtmp+4*i+3}], v{vtmp+24}, s[{srd_ws}:{srd_ws+3}], s{self.sb} offen offset:{16*i}')
        a.e(f's_mov_b64 exec, s[{self.sb+2}:{self.sb+3}]')

class VM:
    def __init__(self, a):
        self.a = a; self.ops = []
    def op(self, line, tag=None):
        self.a.e(line); self.ops.append(tag)
    def mark(self, tag):
        self.ops.append(tag)
    def count_after(self, tag):
        idx = max(i for i, t in enumerate(self.ops) if t == tag)
        return len(self.ops) - 1 - idx
    def wait(self, tag, extra=''):
        n = self.count_after(tag)
        assert n <= 63, n
        self.a.e(f's_waitcnt vmcnt({n}){extra}')
    def wait_all(self, extra=''):
        self.a.e(f's_waitcnt vmcnt(0){extra}')
        self.ops = []

SPIN_MAX = 200000
def poll_flags(a, vflag, vaddr, srd, soff, nlanes, sctr, value_s=None, tmp_exec=None):
    lp = a.newlabel('poll'); dn = a.newlabel('pdone')
    a.e(f's_mov_b32 s{sctr}, 0')
    a.e(f's_mov_b64 exec, {hex((1 << nlanes) - 1)}' if nlanes <= 32 else 's_mov_b64 exec, -1')
    a.label(lp)
    a.e(f'buffer_load_dword v{vflag}, v{vaddr}, s[{srd}:{srd+3}], s{soff} offen sc1')
    a.e(f's_add_u32 s{sctr}, s{sctr}, 1')
    a.e('s_waitcnt vmcnt(0)')
    a.e(f'v_cmp_ne_u32 vcc, 1, v{vflag}')
    a.e(f's_cmp_gt_u32 s{sctr}, {SPIN_MAX}')
    a.e(f's_cbranch_scc1 {dn}')
    a.e(f's_cbranch_vccnz {lp}')
    a.label(dn)
    a.e('s_mov_b64 exec, -1')
```

```python
from common import *

F_O   = WS_FLAG
F_H   = WS_FLAG + 32768
F_A   = WS_FLAG + 65536
F_PRE = WS_FLAG + 98304
FUSED_LDS = 163840
PRE_LDS = 139264
MISC_LDS = 137280

def gen_fused(a, diag=False, name='fused_kernel', kidx=1, V=None):
    V = V or {}
    a.cur = name
    dg = Diag(a, diag, kidx, sbase=64)
    vm = VM(a)
    kernel_header(a, name)
    a.e('s_cmp_ge_u32 s2, 256')
    a.e(f's_cbranch_scc1 L_exit_{name}')
    a.e(f's_load_dwordx2 s[4:5], s[0:1], {KA_WS}')
    a.e(f's_load_dwordx2 s[6:7], s[0:1], {KA_X}')
    a.e(f's_load_dwordx2 s[32:33], s[0:1], {KA_WO}')
    a.e(f's_load_dwordx4 s[36:39], s[0:1], {KA_WG}')
    a.e(f's_load_dwordx4 s[40:43], s[0:1], {KA_WD}')
    dg.start()
    wave_ids(a)
    map_tb_hg(a, 17, 18, 19)
    a.e('s_lshl_b32 s19, s17, 3')
    a.e('s_add_u32 s19, s19, s18')
    a.e('s_lshl_b32 s20, s17, 1')
    a.e('s_lshr_b32 s21, s16, 2')
    a.e('s_add_u32 s20, s20, s21')
    a.e('s_lshl_b32 s20, s20, 5')
    a.e('s_lshl_b32 s21, s18, 2')
    a.e('s_add_u32 s20, s20, s21')
    a.e('s_and_b32 s21, s16, 3')
    a.e('s_add_u32 s20, s20, s21')
    a.e('s_lshl_b32 s20, s20, 10')
    a.e('v_lshlrev_b32 v2, 4, v1')
    a.e('s_waitcnt lgkmcnt(0)')
    srd(a, 8, 4, 5, WS_USED)
    srd(a, 12, 4, 5, KV_BYTES, add=WS_KV)
    a.e('v_lshlrev_b32 v3, 3, v1')
    a.e(f's_mov_b32 s21, {WS_KMAX}')
    vm.op('buffer_load_dwordx2 v[90:91], v3, s[8:11], s21 offen', 'kmax')
    a.e(f's_add_u32 s21, s20, {WS_Q}')
    vm.op('buffer_load_dwordx4 v[4:7], v2, s[8:11], s21 offen', 'q')
    a.e('s_lshl_b32 s21, s16, 10')
    def kvchunk(i):
        if i == 16:
            a.e('s_min_u32 s21, s21, %d' % (129*1024))
        a.e('s_mov_b32 m0, s21')
        a.e('s_nop 0')
        vm.op('buffer_load_dwordx4 v2, s[12:15], s21 offen lds', f'kv{i}')
        if i < 16: a.e('s_add_u32 s21, s21, 8192')
    for i in range(5): kvchunk(i)
    a.e('s_lshl_b32 s44, s2, 3')
    a.e('s_add_u32 s44, s44, s16')
    a.e('s_mul_i32 s56, s16, 3072')
    a.e(f's_add_u32 s56, s56, {PRE_LDS}')
    a.e('v_and_b32 v89, 15, v1')
    a.e('v_lshrrev_b32 v92, 2, v89')
    a.e('v_and_b32 v93, 3, v1')
    a.e('v_lshrrev_b32 v94, 4, v1')
    a.e('s_movk_i32 s45, 3584')
    a.e('v_lshrrev_b32 v95, 1, v1')
    a.e('v_mul_lo_u32 v95, v95, s45')
    a.e('v_and_b32 v96, 1, v1')
    a.e('v_lshl_add_u32 v96, v96, 4, v95')
    a.e('v_lshrrev_b32 v95, 2, v1')
    a.e('v_lshlrev_b32 v95, 10, v95')
    a.e('v_lshl_add_u32 v97, v93, 4, v95')
    a.e('v_lshl_add_u32 v95, v94, 3, v92')
    a.e('v_lshlrev_b32 v95, 5, v95')
    a.e('v_lshl_add_u32 v95, v93, 3, v95')
    a.e('v_add_u32 v98, s56, v95')
    a.e('v_lshrrev_b32 v101, 1, v94')
    a.e('v_and_b32 v95, 1, v94')
    a.e('v_lshlrev_b32 v95, 5, v95')
    a.e('v_lshl_add_u32 v95, v93, 3, v95')
    a.e('v_lshl_add_u32 v95, v92, 6, v95')
    a.e('v_add_u32 v95, s56, v95')
    a.e('v_lshl_add_u32 v99, v101, 9, v95')
    a.e('v_lshl_add_u32 v100, v101, 8, v95')
    lwo = f'L_prewo_{name}'; lpd = f'L_predone_{name}'
    a.e('s_cmp_ge_u32 s44, 1792')
    a.e(f's_cbranch_scc1 {lwo}')
    a.e('s_and_b32 s46, s44, 15')
    a.e(f's_mul_i32 s46, s46, {32*3584}')
    a.e('s_lshr_b32 s47, s44, 4')
    a.e('s_lshl_b32 s47, s47, 5')
    a.e('s_add_u32 s57, s46, s47')
    a.e(f's_mul_hi_u32 s46, s44, {(2**32 + 111)//112}')
    a.e('s_mul_i32 s47, s46, 112')
    a.e('s_sub_u32 s47, s44, s47')
    a.e('s_lshl_b32 s47, s47, 14')
    a.e('s_lshl_b32 s46, s46, 6')
    a.e('s_add_u32 s58, s46, s47')
    srd(a, 48, 36, 37, D*F*2)
    srd(a, 52, 38, 39, D*F*2)
    srd(a, 24, 40, 41, F*D*2)
    a.e('s_lshl_b32 s45, s44, 10')
    a.e(f's_add_u32 s46, s45, {WS_WU}')
    a.e(f's_add_u32 s47, s45, {WS_WD}')
    a.e(f's_add_u32 s45, s45, {WS_WG}')
    a.e('s_mov_b32 s59, 0')
    for fr, (vo, sd, so) in enumerate([(96, 48, 57), (96, 52, 57), (97, 24, 58)]):
        a.e(f's_add_u32 m0, s56, {fr*1024}')
        a.e('s_nop 0')
        a.e(f'buffer_load_dwordx4 v{vo}, s[{sd}:{sd+3}], s{so} offen lds')
    a.e(f's_branch {lpd}')
    a.label(lwo)
    a.e('s_sub_u32 s44, s44, 1792')
    a.e('s_lshl_b32 s44, s44, 1')
    a.e('s_and_b32 s46, s44, 31')
    a.e('s_lshl_b32 s46, s46, 14')
    a.e('s_lshr_b32 s47, s44, 5')
    a.e('s_lshl_b32 s47, s47, 6')
    a.e('s_add_u32 s57, s46, s47')
    a.e('s_add_u32 s58, s57, 16384')
    srd(a, 48, 32, 33, D*D*2)
    a.e('s_lshl_b32 s45, s44, 10')
    a.e(f's_add_u32 s45, s45, {WS_WO}')
    a.e('s_add_u32 s46, s45, 1024')
    a.e('s_mov_b32 s59, 1')
    for fr, so in enumerate([57, 58, 58]):
        a.e(f's_add_u32 m0, s56, {fr*1024}')
        a.e('s_nop 0')
        a.e(f'buffer_load_dwordx4 v97, s[48:51], s{so} offen lds')
    a.label(lpd)
    for fr in range(3): vm.mark('pre')
    for i in range(5, 17): kvchunk(i)
    dg.stamp()
    def pre_store():
        lb = a.newlabel('pb'); le = a.newlabel('pe')
        a.e('s_cmp_eq_u32 s59, 1')
        a.e(f's_cbranch_scc1 {lb}')
        for fr, (va, d2) in enumerate([(98, 128), (98, 128), (99, 256)]):
            a.e(f'ds_read_b64_tr_b16 {vr(104+4*fr,2)}, v{va} offset:{fr*1024}')
            a.e(f'ds_read_b64_tr_b16 {vr(106+4*fr,2)}, v{va} offset:{fr*1024+d2}')
        for r in range(4):
            a.e(f'v_mov_b32 v{116+r}, 0x3f803f80')
        a.e('s_waitcnt lgkmcnt(0)')
        for fr in range(3):
            a.e(f'buffer_store_dwordx4 {vr(104+4*fr,4)}, v2, s[8:11], s{45+fr} offen sc1')
        a.e('v_mfma_f32_16x16x32_bf16 v[120:123], v[104:107], v[116:119], 0')
        a.e('v_mfma_f32_16x16x32_bf16 v[124:127], v[108:111], v[116:119], 0')
        a.e('v_lshrrev_b32 v116, 4, v1')
        a.e('v_lshlrev_b32 v116, 4, v116')
        a.e('s_lshl_b32 s60, s44, 6')
        a.e(f's_add_u32 s61, s60, {WS_CSU}')
        a.e(f's_add_u32 s60, s60, {WS_CSG}')
        a.e('s_mov_b32 exec_lo, 0x00010001')
        a.e('s_mov_b32 exec_hi, 0x00010001')
        a.e('s_nop 4')
        a.e('buffer_store_dwordx4 v[120:123], v116, s[8:11], s60 offen sc1')
        a.e('buffer_store_dwordx4 v[124:127], v116, s[8:11], s61 offen sc1')
        a.e('s_mov_b64 exec, -1')
        a.e(f's_branch {le}')
        a.label(lb)
        for fr in range(2):
            a.e(f'ds_read_b64_tr_b16 {vr(104+4*fr,2)}, v100 offset:{fr*1024}')
            a.e(f'ds_read_b64_tr_b16 {vr(106+4*fr,2)}, v100 offset:{fr*1024+512}')
        a.e('s_waitcnt lgkmcnt(0)')
        for fr in range(2):
            a.e(f'buffer_store_dwordx4 {vr(104+4*fr,4)}, v2, s[8:11], s{45+fr} offen sc1')
        a.label(le)
    VK, VV = 3, 88
    a.e(f'v_mov_b32 v{VK}, v2')
    a.e('v_and_b32 v89, 31, v1')
    a.e('v_lshrrev_b32 v92, 5, v1')
    a.e('v_lshlrev_b32 v92, 8, v92')
    a.e('v_lshl_add_u32 v92, v89, 4, v92')
    a.e('v_mov_b32 v93, 512')
    a.e('v_cmp_gt_u32 vcc, 16, v89')
    a.e('s_nop 1')
    a.e('v_cndmask_b32 v92, v93, v92, vcc')
    a.e(f'v_add_u32 v{VV}, 1024, v92')
    Q = 4; KR = [8, 12]; VR = [[16, 20], [24, 28]]; P = [32, 36]; SB = [40, 56]; O = 72
    for i in range(16): a.e(f'v_mov_b32 v{O+i}, 0')
    for i in range(4):
        a.e(f'v_mov_b32 v{P[1]+i}, 0')
        a.e(f'v_mov_b32 v{VR[1][1]+i}, 0')
    a.e('s_lshr_b32 s22, s17, 1')
    a.e('s_and_b32 s23, s19, 15')
    a.e('s_mul_i32 s23, s23, 7')
    a.e('s_add_u32 s23, s23, s16')
    a.e('s_lshl_b32 s26, s23, 14')
    a.e(f's_add_u32 s27, s26, {WS_WU}')
    a.e(f's_add_u32 s26, s26, {WS_WG}')
    a.e('s_mul_i32 s28, s18, 224')
    a.e('s_mul_i32 s29, s16, 14')
    a.e('s_add_u32 s28, s28, s29')
    a.e('s_lshl_b32 s28, s28, 10')
    a.e(f's_add_u32 s28, s28, {WS_WD}')
    a.e(f's_add_u32 s29, s28, {112*1024}')
    a.e('s_cmp_eq_u32 s16, 7')
    a.e('s_cselect_b32 s26, s28, s26')
    a.e('s_cselect_b32 s27, s29, s27')
    a.e('s_lshl_b32 s30, s18, 6')
    a.e('s_lshl_b32 s31, s16, 2')
    a.e('s_add_u32 s30, s30, s31')
    a.e('s_lshl_b32 s30, s30, 10')
    a.e(f's_add_u32 s30, s30, {WS_WO}')
    def wload(i):
        if i < 8:
            ct, ks = i >> 2, i & 3
            if i == 4: a.e(f's_add_u32 s30, s30, {32*1024}')
            a.e(f'buffer_load_dwordx4 {vr(224+4*i,4)}, v2, s[8:11], s30 offen offset:{ks*1024} sc1')
        else:
            k = i - 8
            sb = 26 + (k & 1)
            a.e(f'buffer_load_dwordx4 {vr(96+4*k,4)}, v2, s[8:11], s{sb} offen sc1')
            a.e(f's_add_u32 s{sb}, s{sb}, 1024')
    sched = 'E0 E1 PV1 LV1 E2 E3 C0 C1 E4 E5 W1 QK LV0 LK X E6 E7 C2 C3 E8 E9 PV0 E10 E11 E12 E13 E14 E15 C4 C5 C6 C7'
    def tile(p, base, hook=None):
        s_cur, s_nxt = SB[p], SB[1-p]
        o1 = (base+1)*KV_TILE; o2 = (base+2)*KV_TILE
        for op in sched.split():
            if op == 'LV0': a.e(f'ds_read_b128 {vr(VR[1-p][0],4)}, v{VV} offset:{o1}')
            elif op == 'LV1': a.e(f'ds_read_b128 {vr(VR[1-p][1],4)}, v{VV} offset:{o1+528}')
            elif op == 'LK': a.e(f'ds_read_b128 {vr(KR[p],4)}, v{VK} offset:{o2}')
            elif op[0] == 'W': a.e('s_waitcnt lgkmcnt(%s)' % op[1:])
            elif op == 'QK': a.e(f'v_mfma_f32_32x32x16_bf16 {vr(s_nxt,16)}, {vr(KR[1-p],4)}, {vr(Q,4)}, 0')
            elif op == 'X':
                if hook: hook()
            elif op[0] == 'E':
                i = int(op[1:]); a.e(f'v_exp_f32 v{s_cur+i}, v{s_cur+i}')
            elif op[0] == 'C':
                i = int(op[1:]); a.e(f'v_cvt_pk_bf16_f32 v{P[i//4] + i % 4}, v{s_cur+2*i}, v{s_cur+2*i+1}')
            elif op == 'PV0': a.e(f'v_mfma_f32_32x32x16_bf16 {vr(O,16)}, {vr(VR[p][0],4)}, {vr(P[0],4)}, {vr(O,16)}')
            elif op == 'PV1': a.e(f'v_mfma_f32_32x32x16_bf16 {vr(O,16)}, {vr(VR[1-p][1],4)}, {vr(P[1],4)}, {vr(O,16)}')
    def bump():
        a.e(f'v_add_u32 v{VK}, {16*KV_TILE}, v{VK}')
        a.e(f'v_add_u32 v{VV}, {16*KV_TILE}, v{VV}')
    vm.wait('kv4')
    a.e('s_barrier')
    dg.stamp()
    a.e(f'ds_read_b128 {vr(KR[0],4)}, v{VK} offset:0')
    a.e(f'ds_read_b128 {vr(VR[0][0],4)}, v{VV} offset:0')
    a.e(f'ds_read_b128 {vr(VR[0][1],4)}, v{VV} offset:528')
    a.e(f'ds_read_b128 {vr(KR[1],4)}, v{VK} offset:{KV_TILE}')
    a.e('s_waitcnt lgkmcnt(3)')
    a.e(f'v_mfma_f32_32x32x16_bf16 {vr(SB[0],16)}, {vr(KR[0],4)}, {vr(Q,4)}, 0')
    a.e('s_nop 15')
    for t in range(16):
        if t == 8:
            vm.wait('pre')
            pre_store()
        tile(t & 1, t)
    bump()
    vm.wait_all()
    a.e('s_barrier')
    lab = a.newlabel('nf')
    a.e('s_cmp_lg_u32 s16, 0')
    a.e(f's_cbranch_scc1 {lab}')
    a.e('v_mov_b32 v89, 1')
    a.e('v_mov_b32 v90, 0')
    a.e('s_lshl_b32 s21, s19, 7')
    a.e(f's_add_u32 s21, s21, {F_PRE}')
    a.e('s_mov_b64 exec, 1')
    a.e('buffer_store_dword v89, v90, s[8:11], s21 offen sc1')
    a.e('s_mov_b64 exec, -1')
    a.label(lab)
    for t in range(16, 24):
        tile(t & 1, t - 16)
    lab = a.newlabel('np')
    a.e('s_cmp_lg_u32 s16, 0')
    a.e(f's_cbranch_scc1 {lab}')
    lp = a.newlabel('pp'); ld = a.newlabel('pd')
    a.e('v_lshlrev_b32 v89, 7, v1')
    a.e(f's_mov_b32 s21, {F_PRE}')
    a.e('s_mov_b32 s22, 0')
    a.label(lp)
    for i in range(4):
        a.e(f's_add_u32 s23, s21, {i*8192}')
        a.e(f'buffer_load_dword v{92+i}, v89, s[8:11], s23 offen sc1')
    a.e('s_add_u32 s22, s22, 1')
    a.e('s_waitcnt vmcnt(0)')
    a.e('v_and_b32 v92, v92, v93')
    a.e('v_and_b32 v94, v94, v95')
    a.e('v_and_b32 v92, v92, v94')
    a.e('v_cmp_ne_u32 vcc, 1, v92')
    a.e(f's_cmp_gt_u32 s22, {SPIN_MAX}')
    a.e(f's_cbranch_scc1 {ld}')
    a.e(f's_cbranch_vccnz {lp}')
    a.label(ld)
    a.label(lab)
    a.e('s_barrier')
    for t in range(24, 64):
        if t in (32, 48): bump()
        tile(t & 1, (t - 16) % 16 if t < 32 else t % 16, hook=(lambda i=t-24: wload(i)))
    a.e('s_nop 1')
    a.e(f'v_mfma_f32_32x32x16_bf16 {vr(O,16)}, {vr(VR[1][1],4)}, {vr(P[1],4)}, {vr(O,16)}')
    dg.stamp()
    a.e('v_lshrrev_b32 v40, 3, v1')
    a.e('v_and_b32 v41, 7, v1')
    a.e('s_lshl_b32 s25, s17, 6')
    a.e('s_lshl_b32 s21, s16, 3')
    a.e('s_add_u32 s25, s25, s21')
    a.e('v_add_u32 v42, s25, v41')
    a.e('v_lshlrev_b32 v43, 10, v42')
    a.e('v_lshl_add_u32 v43, v40, 4, v43')
    a.e('s_lshl_b32 s21, s18, 7')
    a.e('v_add_u32 v43, s21, v43')
    srd(a, 12, 6, 7, S*D*2)
    a.e('buffer_load_dwordx4 v[8:11], v43, s[12:15], 0 offen')
    a.e('s_nop 7')
    a.e(f'v_rcp_f32 v{O+8}, v{O+8}')
    a.e('s_nop 0')
    for i in range(8): a.e(f'v_mul_f32 v{O+i}, v{O+i}, v{O+8}')
    for i in range(4): a.e(f'v_cvt_pk_bf16_f32 v{P[0]+i}, v{O+2*i}, v{O+2*i+1}')
    a.e(f's_add_u32 s21, s20, {WS_O}')
    a.e(f'buffer_store_dwordx4 {vr(P[0],4)}, v2, s[8:11], s21 offen sc1')
    def publish(flag_base):
        a.e('s_waitcnt vmcnt(0) lgkmcnt(0)')
        a.e('s_barrier')
        lab = a.newlabel('nf')
        a.e('s_cmp_lg_u32 s16, 0')
        a.e(f's_cbranch_scc1 {lab}')
        a.e('v_mov_b32 v12, 1')
        a.e('v_mov_b32 v13, 0')
        a.e('s_lshl_b32 s21, s19, 7')
        a.e(f's_add_u32 s21, s21, {flag_base}')
        a.e('s_mov_b64 exec, 1')
        a.e('buffer_store_dword v12, v13, s[8:11], s21 offen sc1')
        a.e('s_mov_b64 exec, -1')
        a.label(lab)
    publish(F_O)
    dg.stamp()
    a.e('s_lshl_b32 s21, s17, 3')
    a.e('s_add_u32 s21, s21, s16')
    a.e('s_lshl_b32 s21, s21, 7')
    a.e(f's_add_u32 s21, s21, {F_O}')
    a.e('v_mov_b32 v13, 0')
    poll_flags(a, 12, 13, 8, 21, 1, 22)
    dg.stamp()
    a.e('s_lshl_b32 s21, s17, 6')
    a.e('s_lshl_b32 s22, s16, 2')
    a.e('s_add_u32 s21, s21, s22')
    a.e('s_lshl_b32 s21, s21, 10')
    a.e(f's_add_u32 s21, s21, {WS_O}')
    for tt in range(2):
        for ks in range(4):
            a.e(f'buffer_load_dwordx4 {vr(16+16*tt+4*ks,4)}, v2, s[8:11], s21 offen offset:{ks*1024} sc1')
        if tt == 0: a.e(f's_add_u32 s21, s21, {32*1024}')
    TILE = {(0,0): 48, (0,1): 64, (1,0): 80, (1,1): 224}
    a.e('s_waitcnt vmcnt(0)')
    for ct in range(2):
        for ks in range(4):
            for tt in range(2):
                t = TILE[(ct, tt)]
                c = '0' if ks == 0 else vr(t, 16)
                a.e(f'v_mfma_f32_32x32x16_bf16 {vr(t,16)}, {vr(224+16*ct+4*ks,4)}, {vr(16+16*tt+4*ks,4)}, {c}')
    BS = 1152
    def reduce_and_final(tiles, res_regs, stamp=True):
        a.e(f's_mul_i32 s21, s16, {16*BS}')
        a.e('v_add_u32 v12, s21, v2')
        a.e('s_nop 7')
        a.e('s_nop 3')
        for ct in range(2):
            for tt in range(2):
                for m in range(4):
                    a.e(f'ds_write_b128 v12, {vr(tiles[(ct,tt)]+4*m,4)} offset:{((ct*2+tt)*4+m)*BS}')
        a.e('s_waitcnt lgkmcnt(0)')
        a.e('s_barrier')
        a.e('v_lshrrev_b32 v12, 3, v1')
        a.e('v_lshrrev_b32 v13, 2, v12')
        a.e('v_lshlrev_b32 v13, 3, v13')
        a.e('v_and_b32 v14, 3, v12')
        a.e('v_add_u32 v13, v13, v14')
        a.e('s_lshr_b32 s21, s16, 2')
        a.e('s_lshl_b32 s21, s21, 2')
        a.e('v_add_u32 v13, s21, v13')
        a.e(f'v_mul_u32_u24 v13, {BS}, v13')
        a.e('s_and_b32 s21, s16, 3')
        a.e('s_lshl_b32 s21, s21, 3')
        a.e('v_and_b32 v14, 7, v1')
        a.e('v_add_u32 v14, s21, v14')
        a.e('v_lshl_add_u32 v13, v14, 4, v13')
        a.e(f'v_add_u32 v14, {4*16*BS}, v13')
        for w in range(8):
            va, off = (13, w*16*BS) if w < 4 else (14, (w-4)*16*BS)
            a.e(f'ds_read_b128 {vr(16+8*w,4)}, v{va} offset:{off}')
            a.e(f'ds_read_b128 {vr(20+8*w,4)}, v{va} offset:{off+512}')
        for w in range(1, 8):
            a.e(f's_waitcnt lgkmcnt({max(0, 14 - 2*w)})')
            for r in range(8): a.e(f'v_add_f32 v{16+r}, v{16+r}, v{16+8*w+r}')
        for r in range(4):
            a.e(f'v_lshlrev_b32 v{80+2*r}, 16, v{res_regs+r}')
            a.e(f'v_and_b32 v{81+2*r}, 0xffff0000, v{res_regs+r}')
        for r in range(8): a.e(f'v_add_f32 v{16+r}, v{16+r}, v{80+r}')
    reduce_and_final(TILE, 8)
    dg.stamp()
    HR = 240
    for r in range(4): a.e(f'v_cvt_pk_bf16_f32 v{HR+r}, v{16+2*r}, v{17+2*r}')
    a.e('v_lshrrev_b32 v40, 3, v1')
    a.e('v_and_b32 v41, 7, v1')
    a.e('v_add_u32 v42, s25, v41')
    a.e('v_lshrrev_b32 v44, 4, v42')
    a.e('v_lshlrev_b32 v44, 14, v44')
    a.e('v_lshrrev_b32 v45, 2, v40')
    a.e('v_lshl_add_u32 v44, v45, 10, v44')
    a.e('v_and_b32 v45, 3, v40')
    a.e('v_lshlrev_b32 v45, 4, v45')
    a.e('v_and_b32 v46, 15, v42')
    a.e('v_add_u32 v45, v45, v46')
    a.e('v_lshl_add_u32 v44, v45, 4, v44')
    a.e('s_lshl_b32 s21, s18, 11')
    a.e(f's_add_u32 s21, s21, {WS_H}')
    a.e(f'buffer_store_dwordx4 {vr(HR,4)}, v44, s[8:11], s21 offen sc1')
    a.e('s_mov_b32 s31, 0x3f803f80')
    a.e('v_mov_b32 v28, 0')
    a.e('v_mov_b32 v29, 0')
    for r in range(4):
        a.e(f'v_dot2_f32_bf16 v28, v{HR+r}, s31, v28')
        a.e(f'v_dot2_f32_bf16 v29, v{HR+r}, v{HR+r}, v29')
    a.e('s_nop 2')
    a.e('v_add_f32_dpp v28, v28, v28 row_ror:8 row_mask:0xf bank_mask:0xf')
    a.e('v_add_f32_dpp v29, v29, v29 row_ror:8 row_mask:0xf bank_mask:0xf')
    a.e('s_nop 1')
    red_g_multi(a, [28, 29], [30, 31])
    a.e('v_lshlrev_b32 v45, 6, v42')
    a.e('s_lshl_b32 s21, s18, 3')
    a.e(f's_add_u32 s21, s21, {WS_ST}')
    a.e('s_mov_b64 exec, 0xff')
    a.e('buffer_store_dwordx2 v[28:29], v45, s[8:11], s21 offen sc1')
    a.e('s_mov_b64 exec, -1')
    publish(F_H)
    dg.stamp()
    a.e('s_lshr_b32 s22, s17, 1')
    a.e('v_lshlrev_b32 v13, 7, v1')
    a.e('s_cmp_eq_u32 s16, 7')
    a.e(f's_cbranch_scc1 L_w7_{name}')
    a.e('s_lshl_b32 s21, s22, 1')
    a.e('s_lshr_b32 s23, s16, 2')
    a.e('s_add_u32 s21, s21, s23')
    a.e('s_lshl_b32 s21, s21, 10')
    a.e(f's_add_u32 s21, s21, {F_H}')
    poll_flags(a, 12, 13, 8, 21, 8, 23)
    dg.stamp()
    def gu_common_addr():
        a.e('v_add_u32 v3, 65536, v2')
        a.e('v_and_b32 v6, 15, v1')
        a.e('v_lshrrev_b32 v7, 4, v1')
        a.e('s_lshl_b32 s23, s22, 17')
        a.e('s_lshl_b32 s24, s16, 14')
        a.e('s_add_u32 s23, s23, s24')
        a.e(f's_add_u32 s23, s23, {WS_H}')
    gu_common_addr()
    A0 = 96; BF = 16
    GT = [48 + 4*j for j in range(8)]
    UT = [80 + 4*j for j in range(4)] + [224 + 4*j for j in range(4)]
    CT = 244
    def hdma():
        a.e('s_mov_b32 m0, s24')
        a.e('s_add_u32 s24, s24, 1024')
        a.e('buffer_load_dwordx4 v2, s[8:11], s23 offen sc1 lds')
        a.e('s_add_u32 s23, s23, 1024')
    vm2 = VM(a)
    def hd(ks):
        hdma(); vm2.mark(f'h{ks}')
    NH0 = V.get('NH0', 6)
    for ks in range(NH0): hd(ks)
    a.e('s_and_b32 s26, s19, 15')
    a.e('s_mul_i32 s26, s26, 7')
    a.e('s_add_u32 s26, s26, s16')
    a.e('v_lshlrev_b32 v8, 6, v6')
    a.e('v_lshl_add_u32 v8, v7, 4, v8')
    a.e('s_lshl_b32 s21, s26, 10')
    a.e(f's_add_u32 s27, s21, {WS_CSU}')
    a.e(f's_add_u32 s21, s21, {WS_CSG}')
    vm2.op(f'buffer_load_dwordx4 {vr(CT,4)}, v8, s[8:11], s21 offen sc1', 'cs')
    vm2.op(f'buffer_load_dwordx4 {vr(CT+4,4)}, v8, s[8:11], s27 offen sc1', 'cs')
    for j in range(8):
        for r in range(4):
            a.e(f'v_mov_b32 v{GT[j]+r}, 0'); a.e(f'v_mov_b32 v{UT[j]+r}, 0')
    def bread(j, ks):
        va = 2 if j < 4 else 3
        a.e(f'ds_read_b128 {vr(BF+4*j,4)}, v{va} offset:{(j%4)*16384 + ks*1024}')
    def wdload(i):
        sb = 28 + (i & 1)
        vm2.op(f'buffer_load_dwordx4 {vr(A0+4*i,4)}, v2, s[8:11], s{sb} offen sc1', f'wd{i}')
        a.e(f's_add_u32 s{sb}, s{sb}, 1024')
    vm2.wait('h1')
    a.e('s_barrier')
    dg.stamp()
    for j in range(8): bread(j, 0)
    hissued = NH0
    for ks in range(16):
        if ks % 2 == 1 and ks < 15:
            vm2.wait(f'h{min(ks+2, 15)}')
            a.e('s_barrier')
        for j in range(8):
            if j % 2 == 0:
                a.e(f's_waitcnt lgkmcnt({6 if ks < 15 else 6 - j})')
            a.e(f'v_mfma_f32_16x16x32_bf16 {vr(GT[j],4)}, {vr(A0+8*ks,4)}, {vr(BF+4*j,4)}, {vr(GT[j],4)}')
            a.e(f'v_mfma_f32_16x16x32_bf16 {vr(UT[j],4)}, {vr(A0+8*ks+4,4)}, {vr(BF+4*j,4)}, {vr(UT[j],4)}')
            if ks < 15: bread(j, ks + 1)
            if j == 1 and hissued < 16:
                hd(hissued); hissued += 1
            if ks >= 1 and j in (3, 6):
                i = 2*(ks-1) + (0 if j == 3 else 1)
                if i < 28: wdload(i)
    dg.stamp()
    STT = 131072
    a.e('v_lshlrev_b32 v9, 3, v6')
    a.e(f'v_add_u32 v9, {STT}, v9')
    for j in range(8): a.e(f'ds_read_b64 {vr(16+2*j,2)}, v9 offset:{j*128}')
    a.e('v_lshrrev_b32 v10, 1, v7')
    a.e('v_lshlrev_b32 v10, 5, v10')
    a.e('v_add_u32 v10, v10, v6')
    a.e('v_lshlrev_b32 v10, 4, v10')
    a.e('v_and_b32 v11, 1, v7')
    a.e('v_lshl_add_u32 v10, v11, 3, v10')
    a.e('s_mul_i32 s21, s22, 448')
    a.e('s_add_u32 s21, s21, s26')
    a.e('s_lshl_b32 s21, s21, 10')
    a.e(f's_add_u32 s21, s21, {WS_ACT}')
    for sh in (8, 4, 2, 1):
        for r in range(8):
            a.e(f'v_add_f32_dpp v{CT+r}, v{CT+r}, v{CT+r} row_ror:{sh} row_mask:0xf bank_mask:0xf')
    a.e('s_waitcnt lgkmcnt(0)')
    for j in range(8):
        mean, r2 = 16 + 2*j, 17 + 2*j
        g0, u0 = GT[j], UT[j]
        for r in range(4):
            a.e(f'v_fma_f32 v{g0+r}, -v{mean}, v{CT+r}, v{g0+r}')
            a.e(f'v_fma_f32 v{u0+r}, -v{mean}, v{CT+4+r}, v{u0+r}')
        for r in range(4):
            a.e(f'v_max_f32 v{g0+r}, 0, v{g0+r}')
            a.e(f'v_mul_f32 v{u0+r}, v{u0+r}, v{r2}')
        for r in range(4): a.e(f'v_mul_f32 v{g0+r}, v{g0+r}, v{u0+r}')
        a.e(f'v_cvt_pk_bf16_f32 v{32+2*j}, v{g0}, v{g0+1}')
        a.e(f'v_cvt_pk_bf16_f32 v{33+2*j}, v{g0+2}, v{g0+3}')
        a.e(f'buffer_store_dwordx2 {vr(32+2*j,2)}, v10, s[8:11], s21 offen offset:{(j&1)*256} sc1')
        if j & 1: a.e(f's_add_u32 s21, s21, {112*1024}')
    a.e(f's_branch L_gudone_{name}')
    a.label(f'L_w7_{name}')
    n_main = dg.n
    dg.n = n_main - 3 if diag else 0
    a.e('s_lshl_b32 s21, s22, 11')
    a.e(f's_add_u32 s21, s21, {F_H}')
    poll_flags(a, 12, 13, 8, 21, 16, 23)
    dg.stamp()
    gu_common_addr()
    a.e('s_lshl_b32 s21, s22, 7')
    a.e('v_add_u32 v8, s21, v1')
    a.e('v_lshlrev_b32 v8, 6, v8')
    a.e(f's_mov_b32 s21, {WS_ST}')
    a.e(f's_mov_b32 s34, {f32bits(1.0/512)}')
    a.e(f's_mov_b32 s35, {f32bits(1e-5)}')
    for ks in range(4): hdma()
    for u in range(2):
        for i in range(4):
            a.e(f'buffer_load_dwordx4 {vr(16+16*u+4*i,4)}, v8, s[8:11], s21 offen offset:{16*i} sc1')
        a.e(f's_add_u32 s21, s21, {64*64}')
    for ks in range(4, 16): hdma()
    a.e(f's_waitcnt vmcnt({8 + 14})')
    a.e('s_barrier')
    dg.stamp()
    for ks in range(1, 15, 2):
        need = min(ks + 2, 15)
        n_after = 15 - need + (8 if need < 4 else 0)
        a.e(f's_waitcnt vmcnt({n_after})' + (' lgkmcnt(0)' if ks == 13 else ''))
        a.e('s_barrier')
        if ks == 3:
            for u in range(2):
                b = 16 + 16*u
                for i in range(1, 8):
                    a.e(f'v_add_f32 v{b}, v{b}, v{b+2*i}')
                    a.e(f'v_add_f32 v{b+1}, v{b+1}, v{b+2*i+1}')
                a.e(f'v_mul_f32 v{b}, s34, v{b}')
                a.e(f'v_mul_f32 v{b+1}, s34, v{b+1}')
                a.e(f'v_fma_f32 v{b+1}, -v{b}, v{b}, v{b+1}')
                a.e(f'v_max_f32 v{b+1}, 0, v{b+1}')
                a.e(f'v_add_f32 v{b+1}, s35, v{b+1}')
                a.e(f'v_rcp_f32 v{b+1}, v{b+1}')
            a.e('v_lshlrev_b32 v9, 3, v1')
            a.e(f'v_add_u32 v9, {STT}, v9')
            a.e('s_nop 0')
            a.e('ds_write_b64 v9, v[16:17]')
            a.e('ds_write_b64 v9, v[32:33] offset:512')
    dg.stamp()
    dg.n = n_main
    a.label(f'L_gudone_{name}')
    publish(F_A)
    dg.stamp()
    a.e('s_lshr_b32 s22, s17, 1')
    a.e('s_lshl_b32 s21, s22, 4')
    a.e('s_lshl_b32 s23, s16, 1')
    a.e('s_add_u32 s21, s21, s23')
    a.e('s_lshl_b32 s21, s21, 7')
    a.e(f's_add_u32 s21, s21, {F_A}')
    a.e('v_lshlrev_b32 v13, 7, v1')
    poll_flags(a, 12, 13, 8, 21, 2, 23)
    dg.stamp()
    a.e('s_mul_i32 s21, s17, 224')
    a.e('s_mul_i32 s23, s16, 14')
    a.e('s_add_u32 s21, s21, s23')
    a.e('s_lshl_b32 s21, s21, 10')
    a.e(f's_add_u32 s21, s21, {WS_ACT}')
    a.e(f's_add_u32 s23, s21, {112*1024}')
    RING = [208, 216, 16, 24, 32, 40]
    vm3 = VM(a)
    def aload(kk):
        s = RING[kk % 6]
        vm3.op(f'buffer_load_dwordx4 {vr(s,4)}, v2, s[8:11], s21 offen sc1', f'a{kk}')
        vm3.op(f'buffer_load_dwordx4 {vr(s+4,4)}, v2, s[8:11], s23 offen sc1', f'a{kk}')
        a.e('s_add_u32 s21, s21, 1024')
        a.e('s_add_u32 s23, s23, 1024')
    for kk in range(6): aload(kk)
    DT = {(0,0): 48, (0,1): 64, (1,0): 80, (1,1): 224}
    for kk in range(14):
        vm3.wait(f'a{kk}')
        s = RING[kk % 6]
        for ct in range(2):
            for tt in range(2):
                t = DT[(ct, tt)]
                c = '0' if kk == 0 else vr(t, 16)
                a.e(f'v_mfma_f32_32x32x16_bf16 {vr(t,16)}, {vr(A0+8*kk+4*ct,4)}, {vr(s+4*tt,4)}, {c}')
        if kk + 6 < 14: aload(kk + 6)
    dg.stamp()
    reduce_and_final(DT, HR)
    for r in range(4): a.e(f'v_cvt_pk_bf16_f32 v{24+r}, v{16+2*r}, v{17+2*r}')
    a.e('v_lshrrev_b32 v40, 3, v1')
    a.e('v_and_b32 v41, 7, v1')
    a.e('v_add_u32 v42, s25, v41')
    a.e('v_lshlrev_b32 v43, 10, v42')
    a.e('v_lshl_add_u32 v43, v40, 4, v43')
    a.e('s_lshl_b32 s21, s18, 7')
    a.e('v_add_u32 v43, s21, v43')
    srd(a, 12, 42, 43, S*D*2)
    a.e('buffer_store_dwordx4 v[24:27], v43, s[12:15], 0 offen')
    dg.finish(100 if diag else 0)
    a.e('s_waitcnt vmcnt(0)')
    a.label(f'L_exit_{name}')
    a.e('s_endpgm')
    return name, 256, 100
```

```python
from common import *

def gen_k1(a, diag=False, name='qkv_kernel', kidx=0):
    a.cur = name
    dg = Diag(a, diag, kidx)
    kernel_header(a, name)
    a.e('s_cmp_ge_u32 s2, 256')
    a.e(f's_cbranch_scc1 L_exit_{name}')
    a.e(f's_load_dwordx2 s[4:5], s[0:1], {KA_WS}')
    a.e(f's_load_dwordx4 s[32:35], s[0:1], {KA_X}')
    a.e(f's_load_dwordx4 s[36:39], s[0:1], {KA_WK}')
    dg.start()
    wave_ids(a)
    map_tb_hg(a, 17, 18, 19)
    a.e('s_waitcnt lgkmcnt(0)')
    dg.stamp()
    srd(a, 8, 4, 5, WS_USED)
    srd(a, 12, 32, 33, S*D*2)
    srd(a, 20, 34, 35, D*D*2)
    a.e('s_and_b32 s19, s18, 1')
    a.e('s_cmp_eq_u32 s19, 0')
    a.e('s_cselect_b32 s28, s36, s38')
    a.e('s_cselect_b32 s29, s37, s39')
    srd(a, 24, 28, 29, D*DH*2)
    a.e('s_lshl_b32 s28, s17, 3')
    a.e('s_add_u32 s28, s28, s18')
    a.e('s_lshl_b32 s28, s28, 7')
    a.e(f's_add_u32 s28, s28, {WS_FLAG}')
    a.e('v_lshlrev_b32 v2, 15, v1')
    a.e('v_mov_b32 v3, 0')
    lz = a.newlabel('nz')
    a.e('s_cmp_lg_u32 s16, 0')
    a.e(f's_cbranch_scc1 {lz}')
    a.e('s_mov_b64 exec, 0xf')
    a.e('buffer_store_dword v3, v2, s[8:11], s28 offen')
    a.e('s_mov_b64 exec, -1')
    a.label(lz)
    a.e('v_and_b32 v6, 15, v1')
    a.e('v_lshrrev_b32 v7, 4, v1')
    a.e('v_lshlrev_b32 v2, 10, v6')
    a.e('v_lshl_add_u32 v2, v7, 4, v2')
    a.e('s_lshr_b32 s19, s16, 1')
    a.e('s_and_b32 s28, s16, 1')
    a.e('s_lshl_b32 s28, s28, 3')
    a.e('s_lshl_b32 s29, s17, 2')
    a.e('s_add_u32 s29, s29, s19')
    a.e('s_lshl_b32 s29, s29, 14')
    a.e('s_lshl_b32 s30, s28, 6')
    a.e('s_add_u32 s50, s29, s30')
    a.e('s_lshl_b32 s30, s19, 4')
    a.e('s_add_u32 s30, s30, s28')
    a.e('s_lshl_b32 s51, s30, 10')
    a.e('v_lshrrev_b32 v8, 3, v1')
    a.e('v_and_b32 v9, 7, v1')
    a.e('v_lshrrev_b32 v10, 1, v9')
    a.e('v_bfe_u32 v11, v1, 4, 1')
    a.e('v_xor_b32 v10, v10, v11')
    a.e('v_xor_b32 v11, 2, v10')
    a.e('v_and_b32 v9, 1, v9')
    a.e('v_lshl_or_b32 v10, v10, 1, v9')
    a.e('v_lshl_or_b32 v11, v11, 1, v9')
    a.e('v_lshlrev_b32 v8, 10, v8')
    a.e('v_lshl_add_u32 v3, v10, 4, v8')
    a.e('v_lshl_add_u32 v4, v11, 4, v8')
    a.e('s_and_b32 s28, s16, 3')
    a.e('s_lshr_b32 s29, s16, 2')
    a.e('s_lshl_b32 s29, s29, 3')
    a.e('s_add_u32 s28, s28, s29')
    a.e('s_lshl_b32 s29, s28, 15')
    a.e('s_lshl_b32 s30, s18, 7')
    a.e('s_add_u32 s52, s29, s30')
    a.e('s_lshl_b32 s53, s28, 12')
    a.e('s_add_u32 s53, s53, 65536')
    for stg in range(2):
        for i in range(4):
            a.e('s_mov_b32 m0, s51')
            a.e('s_add_u32 s51, s51, 1024')
            a.e('buffer_load_dwordx4 v2, s[12:15], s50 offen lds')
            a.e('s_add_u32 s50, s50, 64')
        for i in range(4):
            a.e('s_mov_b32 m0, s53')
            a.e('s_add_u32 s53, s53, 1024')
            a.e(f'buffer_load_dwordx4 v{3 + (i & 1)}, s[20:23], s52 offen lds')
            a.e('s_add_u32 s52, s52, 8192')
        if stg == 0:
            a.e(f's_add_u32 s52, s52, {4*32768 - 4*8192}')
            a.e(f's_add_u32 s53, s53, {4*4096 - 4*1024}')
    a.e('v_lshlrev_b32 v5, 4, v1')
    a.e('s_lshl_b32 s28, s16, 11')
    a.e('s_add_u32 s29, s28, 131072')
    for i in range(2):
        a.e('s_mov_b32 m0, s29')
        a.e('s_add_u32 s29, s29, 1024')
        a.e('buffer_load_dwordx4 v5, s[24:27], s28 offen lds')
        a.e('s_add_u32 s28, s28, 1024')
    dg.stamp()
    FG, KH = 40, 41
    a.e(f's_and_b32 s{FG}, s16, 3')
    a.e(f's_lshr_b32 s{KH}, s16, 2')
    VTR, VB, VS = 12, 13, 14
    a.e('v_lshrrev_b32 v8, 2, v6')
    a.e('v_and_b32 v9, 3, v1')
    a.e('v_lshrrev_b32 v10, 1, v8')
    a.e('v_and_b32 v11, 1, v7')
    a.e('v_lshl_or_b32 v10, v11, 1, v10')
    a.e(f'v_xor_b32 v10, s{FG}, v10')
    a.e('v_lshl_add_u32 v8, v7, 3, v8')
    a.e('v_lshlrev_b32 v8, 7, v8')
    a.e('v_lshl_add_u32 v8, v10, 5, v8')
    a.e('v_lshl_add_u32 v8, v9, 3, v8')
    a.e(f's_lshl_b32 s28, s{KH}, 15')
    a.e('s_add_u32 s28, s28, 65536')
    a.e(f'v_add_u32 v{VTR}, s28, v8')
    a.e('v_lshlrev_b32 v8, 4, v1')
    a.e(f's_lshl_b32 s28, s{KH}, 13')
    a.e(f'v_add_u32 v{VB}, s28, v8')
    a.e(f's_lshl_b32 s29, s{FG}, 14')
    a.e(f'v_add_u32 v{VS}, s29, v{VB}')
    VKB = 15
    a.e('s_lshr_b32 s28, s18, 1')
    a.e('s_lshl_b32 s28, s28, 14')
    a.e('s_lshl_b32 s29, s16, 11')
    a.e('s_add_u32 s28, s28, s29')
    a.e(f'v_add_u32 v{VKB}, s28, v8')
    VKA = 5
    a.e('v_lshrrev_b32 v8, 2, v6')
    a.e('v_lshl_add_u32 v8, v7, 3, v8')
    a.e('v_lshlrev_b32 v8, 5, v8')
    a.e('v_and_b32 v9, 3, v1')
    a.e('v_lshl_add_u32 v8, v9, 3, v8')
    a.e('s_lshl_b32 s28, s16, 11')
    a.e('s_add_u32 s28, s28, 131072')
    a.e(f'v_add_u32 v{VKA}, s28, v8')
    AF = [40, 44]; BF = [48, 68]
    ACC = 88; TCS, TSUM, TSQ = 104, 108, 112
    KACC, KCS = 116, 120; KA = 32; KB = 16; ONES = 24
    for r in range(ACC, 124):
        a.e(f'v_mov_b32 v{r}, 0')
    for r in range(4):
        a.e(f'v_mov_b32 v{ONES+r}, 0x3f803f80')
    a.e('s_waitcnt vmcnt(10)')
    dg.stamp()
    a.e('s_barrier')
    dg.stamp()
    def reads(i):
        s = i & 1
        a.e(f'ds_read_b64_tr_b16 {vr(AF[s],2)}, v{VTR} offset:{i*4096}')
        a.e(f'ds_read_b64_tr_b16 {vr(AF[s]+2,2)}, v{VTR} offset:{i*4096+512}')
        for tg in range(4):
            a.e(f'ds_read_b128 {vr(BF[s]+4*tg,4)}, v{VB} offset:{tg*16384+i*1024}')
        a.e(f'ds_read_b128 {vr(BF[s]+16,4)}, v{VS} offset:{i*1024}')
    def mf(d, x, y): a.e(f'v_mfma_f32_16x16x32_bf16 {vr(d,4)}, {vr(x,4)}, {vr(y,4)}, {vr(d,4)}')
    reads(0)
    for i in range(8):
        s = i & 1
        if i == 3:
            a.e('s_waitcnt vmcnt(0)')
            a.e('s_barrier')
            dg.stamp()
            for u in range(2):
                a.e(f'ds_read_b64_tr_b16 {vr(KA+4*u,2)}, v{VKA} offset:{u*1024}')
                a.e(f'ds_read_b64_tr_b16 {vr(KA+4*u+2,2)}, v{VKA} offset:{u*1024+128}')
                a.e(f'ds_read_b128 {vr(KB+4*u,4)}, v{VKB} offset:{u*1024}')
        if i < 7:
            reads(i + 1)
            a.e('s_waitcnt lgkmcnt(7)')
        else:
            a.e('s_waitcnt lgkmcnt(0)')
        for tg in range(4):
            mf(ACC+4*tg, AF[s], BF[s]+4*tg)
        mf(TCS, AF[s], ONES)
        mf(TSUM, ONES, BF[s]+16)
        mf(TSQ, BF[s]+16, BF[s]+16)
        if i in (4, 5):
            mf(KACC, KA+4*(i-4), KB+4*(i-4))
            mf(KCS, KA+4*(i-4), ONES)
    dg.stamp()
    a.e('v_and_b32 v8, 3, v6')
    a.e('v_lshrrev_b32 v9, 2, v6')
    a.e('s_nop 4')
    a.e('v_cmp_eq_u32 vcc, 1, v8')
    a.e('s_nop 1')
    a.e(f'v_cndmask_b32 v{TSQ}, v{TSQ}, v{TSQ+1}, vcc')
    a.e('v_cmp_eq_u32 vcc, 2, v8')
    a.e('s_nop 1')
    a.e(f'v_cndmask_b32 v{TSQ}, v{TSQ}, v{TSQ+2}, vcc')
    a.e('v_cmp_eq_u32 vcc, 3, v8')
    a.e('s_nop 1')
    a.e(f'v_cndmask_b32 v{TSQ}, v{TSQ}, v{TSQ+3}, vcc')
    a.e('v_cmp_eq_u32 vcc, v9, v7')
    a.e('s_nop 1')
    a.e(f'v_cndmask_b32 v{TSUM+1}, 0, v{TSQ}, vcc')
    red_g(a, TSUM+1, 16)
    SUM = TSUM
    a.e('s_barrier')
    ST, CSB, KVP, KCSB = 32768, 33792, 41984, 50176
    a.e('v_lshlrev_b32 v8, 4, v1')
    a.e(f's_lshl_b32 s28, s{FG}, 13')
    a.e(f's_lshl_b32 s29, s{KH}, 12')
    a.e('s_add_u32 s28, s28, s29')
    a.e('v_add_u32 v9, s28, v8')
    for tg in range(4):
        a.e(f'ds_write_b128 v9, {vr(ACC+4*tg,4)} offset:{tg*1024}')
    a.e('s_lshl_b32 s28, s16, 10')
    a.e('v_add_u32 v9, s28, v8')
    a.e(f'ds_write_b128 v9, {vr(KACC,4)} offset:{KVP}')
    a.e(f'ds_write_b128 v9, {vr(KCS,4)} offset:{KCSB}')
    a.e(f'ds_write_b128 v9, {vr(TCS,4)} offset:{CSB}')
    a.e(f's_lshl_b32 s28, s{FG}, 1')
    a.e(f's_add_u32 s28, s28, s{KH}')
    a.e('s_lshl_b32 s29, s28, 7')
    a.e('v_lshlrev_b32 v10, 3, v6')
    a.e('v_add_u32 v10, s29, v10')
    a.e('s_mov_b64 exec, 0xffff')
    a.e(f'ds_write_b64 v10, {vr(SUM,2)} offset:{ST}')
    a.e('s_mov_b64 exec, -1')
    a.e('s_waitcnt lgkmcnt(0)')
    a.e('s_barrier')
    dg.stamp()
    a.e(f's_lshl_b32 s28, s{FG}, 13')
    a.e(f's_lshl_b32 s29, s{KH}, 11')
    a.e('s_add_u32 s28, s28, s29')
    a.e('v_add_u32 v9, s28, v8')
    for u in range(2):
        a.e(f'ds_read_b128 {vr(40+8*u,4)}, v9 offset:{u*1024}')
        a.e(f'ds_read_b128 {vr(44+8*u,4)}, v9 offset:{4096+u*1024}')
    a.e(f's_lshl_b32 s29, s{KH}, 9')
    a.e('v_lshlrev_b32 v10, 3, v6')
    a.e('v_add_u32 v10, s29, v10')
    for u in range(2):
        a.e(f'ds_read_b64 {vr(56+4*u,2)}, v10 offset:{ST+u*256}')
        a.e(f'ds_read_b64 {vr(58+4*u,2)}, v10 offset:{ST+u*256+128}')
    a.e(f's_lshl_b32 s29, s{FG}, 10')
    a.e('v_add_u32 v11, s29, v8')
    a.e(f'ds_read_b128 {vr(64,4)}, v11 offset:{CSB}')
    a.e(f'ds_read_b128 {vr(68,4)}, v11 offset:{CSB+4096}')
    a.e('v_lshrrev_b32 v16, 1, v7')
    a.e('v_lshlrev_b32 v16, 5, v16')
    a.e('v_add_u32 v16, v16, v6')
    a.e('v_lshlrev_b32 v16, 4, v16')
    a.e('v_and_b32 v17, 1, v7')
    a.e('v_lshl_add_u32 v16, v17, 3, v16')
    a.e('s_lshl_b32 s28, s17, 1')
    a.e(f's_add_u32 s28, s28, s{KH}')
    a.e('s_lshl_b32 s28, s28, 5')
    a.e('s_lshl_b32 s29, s18, 2')
    a.e('s_add_u32 s28, s28, s29')
    a.e(f's_add_u32 s28, s28, s{FG}')
    a.e('s_lshl_b32 s28, s28, 10')
    a.e(f's_add_u32 s28, s28, {WS_Q}')
    a.e(f's_mov_b32 s42, {f32bits(1.0/512)}')
    a.e(f's_mov_b32 s43, {f32bits(1e-5)}')
    a.e(f's_mov_b32 s44, {f32bits(QSCALE)}')
    a.e('s_waitcnt lgkmcnt(0)')
    for r in range(4):
        a.e(f'v_add_f32 v{64+r}, v{64+r}, v{68+r}')
    def ln_stats(b, mean, rstd):
        a.e(f'v_add_f32 v{b}, v{b}, v{b+2}')
        a.e(f'v_add_f32 v{b+1}, v{b+1}, v{b+3}')
        a.e(f'v_mul_f32 v{mean}, s42, v{b}')
        a.e(f'v_mul_f32 v{b+1}, s42, v{b+1}')
        a.e(f'v_fma_f32 v{b+1}, -v{mean}, v{mean}, v{b+1}')
        a.e(f'v_max_f32 v{b+1}, 0, v{b+1}')
        a.e(f'v_add_f32 v{b+1}, s43, v{b+1}')
        a.e(f'v_rsq_f32 v{rstd}, v{b+1}')
    for u in range(2):
        ln_stats(56+4*u, 72+u, 74+u)
    a.e('s_nop 0')
    for u in range(2):
        a.e(f'v_mul_f32 v{74+u}, s44, v{74+u}')
        for r in range(4):
            a.e(f'v_add_f32 v{40+8*u+r}, v{40+8*u+r}, v{44+8*u+r}')
            a.e(f'v_fma_f32 v{40+8*u+r}, -v{72+u}, v{64+r}, v{40+8*u+r}')
            a.e(f'v_mul_f32 v{40+8*u+r}, v{40+8*u+r}, v{74+u}')
        a.e(f'v_cvt_pk_bf16_f32 v{76+2*u}, v{40+8*u}, v{41+8*u}')
        a.e(f'v_cvt_pk_bf16_f32 v{77+2*u}, v{42+8*u}, v{43+8*u}')
        a.e(f'buffer_store_dwordx2 {vr(76+2*u,2)}, v16, s[8:11], s28 offen offset:{u*256}')
    a.e('s_cmp_lg_u32 s16, 7')
    a.e(f's_cbranch_scc1 L_done_{name}')
    for w in range(8):
        a.e(f'ds_read_b128 {vr(40+4*w,4)}, v8 offset:{KVP + w*1024}')
    for w in range(8):
        a.e(f'ds_read_b128 {vr(80+4*w,4)}, v8 offset:{KCSB + w*1024}')
    a.e('s_lshr_b32 s45, s18, 1')
    a.e('s_lshl_b32 s29, s45, 8')
    a.e('v_lshlrev_b32 v10, 3, v6')
    a.e('v_add_u32 v10, s29, v10')
    a.e('s_waitcnt lgkmcnt(8)')
    for w in range(1, 8):
        for r in range(4):
            a.e(f'v_add_f32 v{40+r}, v{40+r}, v{40+4*w+r}')
    a.e(f'ds_read_b64 {vr(56,2)}, v10 offset:{ST}')
    a.e(f'ds_read_b64 {vr(58,2)}, v10 offset:{ST+128}')
    a.e('s_waitcnt lgkmcnt(0)')
    for w in range(1, 8):
        for r in range(4):
            a.e(f'v_add_f32 v{80+r}, v{80+r}, v{80+4*w+r}')
    ln_stats(56, 72, 74)
    a.e('s_nop 0')
    for r in range(4):
        a.e(f'v_fma_f32 v{40+r}, -v72, v{80+r}, v{40+r}')
        a.e(f'v_mul_f32 v{40+r}, v{40+r}, v74')
    a.e('v_cvt_pk_bf16_f32 v76, v40, v41')
    a.e('v_cvt_pk_bf16_f32 v77, v42, v43')
    a.e('s_lshl_b32 s46, s17, 2')
    a.e('s_add_u32 s46, s46, s45')
    a.e('s_lshr_b32 s47, s46, 1')
    a.e(f's_mul_i32 s47, s47, {KV_TILE}')
    a.e(f's_add_u32 s47, s47, {WS_KV}')
    a.e('s_and_b32 s48, s46, 1')
    a.e('s_and_b32 s19, s18, 1')
    a.e('s_cmp_eq_u32 s19, 1')
    a.e(f's_cbranch_scc1 L_v_{name}')
    a.e('s_lshl_b32 s48, s48, 8')
    a.e('s_add_u32 s47, s47, s48')
    a.e('buffer_store_dwordx2 v[76:77], v16, s[8:11], s47 offen')
    a.e('v_mov_b32 v44, 0')
    a.e('v_dot2_f32_bf16 v44, v76, v76, v44')
    a.e('v_dot2_f32_bf16 v44, v77, v77, v44')
    a.e('s_nop 2')
    red_g(a, 44, 45)
    for sh in (8, 4, 2, 1):
        a.e('s_nop 1')
        a.e(f'v_max_f32_dpp v44, v44, v44 row_ror:{sh} row_mask:0xf bank_mask:0xf')
    a.e('s_lshl_b32 s46, s46, 2')
    a.e(f's_add_u32 s46, s46, {WS_KMAX}')
    a.e('v_mov_b32 v45, 0')
    a.e('s_mov_b64 exec, 1')
    a.e('buffer_store_dword v44, v45, s[8:11], s46 offen')
    a.e('s_mov_b64 exec, -1')
    a.e(f's_branch L_done_{name}')
    a.label(f'L_v_{name}')
    a.e('s_mul_i32 s48, s48, 528')
    a.e('s_add_u32 s47, s47, s48')
    a.e('s_add_u32 s47, s47, 1024')
    a.e('v_bfe_u32 v44, v6, 2, 1')
    a.e('v_lshlrev_b32 v44, 8, v44')
    a.e('v_lshl_add_u32 v44, v7, 6, v44')
    a.e('v_and_b32 v45, 3, v6')
    a.e('v_lshrrev_b32 v46, 3, v6')
    a.e('v_lshl_add_u32 v45, v46, 2, v45')
    a.e('v_lshl_add_u32 v44, v45, 1, v44')
    a.e('buffer_store_short v76, v44, s[8:11], s47 offen offset:0')
    a.e('buffer_store_short_d16_hi v76, v44, s[8:11], s47 offen offset:16')
    a.e('buffer_store_short v77, v44, s[8:11], s47 offen offset:32')
    a.e('buffer_store_short_d16_hi v77, v44, s[8:11], s47 offen offset:48')
    for r in range(4):
        a.e(f'v_mov_b32 v{48+r}, 0x3f803f80')
    a.e('v_mov_b32 v45, 0')
    a.e('s_mov_b64 exec, 1')
    a.e('buffer_store_dwordx4 v[48:51], v45, s[8:11], s47 offen offset:512')
    a.e('s_mov_b64 exec, -1')
    a.label(f'L_done_{name}')
    dg.finish(200 if diag else 0)
    a.e('s_waitcnt vmcnt(0)')
    a.label(f'L_exit_{name}')
    a.e('s_endpgm')
    return name, (232 if diag else 128), 100
K1_LDS = 131072 + 16384

if __name__ == '__main__':
    a = Asm()
    a(f'; @launch kernel=qkv_kernel grid=(256,1,1) block=(512,1,1) lds={K1_LDS}')
    a('.amdgcn_target "amdgcn-amd-amdhsa--gfx950"')
    a('.text')
    n, nv, ns = gen_k1(a, diag=True)
    a('.section .rodata,"a"')
    a(kernel_desc(n, nv, ns))
    open('k1.s', 'w').write(a.text())
```

```python
from common import *

def gen_k2(a, diag=False, name='attn_kernel', kidx=1, prepass=True):
    a.cur = name
    dg = Diag(a, diag, kidx, sbase=64)
    kernel_header(a, name)
    a.e('s_cmp_ge_u32 s2, 256')
    a.e(f's_cbranch_scc1 L_exit_{name}')
    a.e(f's_load_dwordx2 s[4:5], s[0:1], {KA_WS}')
    a.e(f's_load_dwordx2 s[32:33], s[0:1], {KA_WO}')
    a.e(f's_load_dwordx4 s[36:39], s[0:1], {KA_WG}')
    a.e(f's_load_dwordx2 s[34:35], s[0:1], {KA_WD}')
    dg.start()
    wave_ids(a)
    map_tb_hg(a, 17, 18, 19)
    a.e('s_lshl_b32 s17, s17, 1')
    a.e('s_lshr_b32 s19, s16, 2')
    a.e('s_add_u32 s17, s17, s19')
    a.e('s_lshl_b32 s18, s18, 2')
    a.e('s_and_b32 s19, s16, 3')
    a.e('s_add_u32 s18, s18, s19')
    a.e('s_lshl_b32 s17, s17, 5')
    a.e('s_add_u32 s17, s17, s18')
    a.e('s_lshl_b32 s17, s17, 10')
    a.e('v_lshlrev_b32 v2, 4, v1')
    a.e('s_waitcnt lgkmcnt(0)')
    dg.stamp()
    srd(a, 8, 4, 5, WS_USED)
    srd(a, 12, 4, 5, KV_BYTES, add=WS_KV)
    a.e(f's_add_u32 s20, s17, {WS_Q}')
    a.e('buffer_load_dwordx4 v[4:7], v2, s[8:11], s20 offen')
    a.e('s_lshl_b32 s20, s16, 10')
    for i in range(17):
        a.e('s_mov_b32 m0, s20')
        a.e('s_nop 0')
        a.e('buffer_load_dwordx4 v2, s[12:15], s20 offen lds')
        if i < 16:
            a.e('s_add_u32 s20, s20, 8192')
    dg.stamp()
    NPRE = 0
    PRE_LDS = 139264
    if prepass:
        NPRE = 3
        a.e('s_lshl_b32 s44, s2, 3')
        a.e('s_add_u32 s44, s44, s16')
        a.e('s_mul_i32 s56, s16, 3072')
        a.e(f's_add_u32 s56, s56, {PRE_LDS}')
        a.e('v_and_b32 v90, 15, v1')
        a.e('v_lshrrev_b32 v91, 2, v90')
        a.e('v_and_b32 v92, 3, v1')
        a.e('v_lshrrev_b32 v93, 4, v1')
        a.e('s_movk_i32 s45, 3584')
        a.e('v_lshrrev_b32 v94, 1, v1')
        a.e('v_mul_lo_u32 v94, v94, s45')
        a.e('v_and_b32 v95, 1, v1')
        a.e('v_lshl_add_u32 v96, v95, 4, v94')
        a.e('v_lshrrev_b32 v94, 2, v1')
        a.e('v_lshlrev_b32 v94, 10, v94')
        a.e('v_lshl_add_u32 v97, v92, 4, v94')
        a.e('v_lshl_add_u32 v94, v93, 3, v91')
        a.e('v_lshlrev_b32 v94, 5, v94')
        a.e('v_lshl_add_u32 v94, v92, 3, v94')
        a.e('v_add_u32 v98, s56, v94')
        a.e('v_lshrrev_b32 v95, 1, v93')
        a.e('v_and_b32 v94, 1, v93')
        a.e('v_lshlrev_b32 v94, 5, v94')
        a.e('v_lshl_add_u32 v94, v92, 3, v94')
        a.e('v_lshl_add_u32 v94, v91, 6, v94')
        a.e('v_add_u32 v94, s56, v94')
        a.e('v_lshl_add_u32 v99, v95, 9, v94')
        a.e('v_lshl_add_u32 v100, v95, 8, v94')
        a.e('s_cmp_ge_u32 s44, 1792')
        a.e(f's_cbranch_scc1 L_prewo_{name}')
        a.e('s_and_b32 s46, s44, 15')
        a.e(f's_mul_i32 s46, s46, {32*3584}')
        a.e('s_lshr_b32 s47, s44, 4')
        a.e('s_lshl_b32 s47, s47, 5')
        a.e('s_add_u32 s57, s46, s47')
        a.e(f's_mul_hi_u32 s46, s44, {(2**32 + 111)//112}')
        a.e('s_mul_i32 s47, s46, 112')
        a.e('s_sub_u32 s47, s44, s47')
        a.e('s_lshl_b32 s47, s47, 14')
        a.e('s_lshl_b32 s46, s46, 6')
        a.e('s_add_u32 s58, s46, s47')
        srd(a, 48, 36, 37, D*F*2)
        srd(a, 52, 38, 39, D*F*2)
        srd(a, 24, 34, 35, F*D*2)
        a.e('s_lshl_b32 s45, s44, 10')
        a.e(f's_add_u32 s46, s45, {WS_WU}')
        a.e(f's_add_u32 s47, s45, {WS_WD}')
        a.e(f's_add_u32 s45, s45, {WS_WG}')
        a.e('s_mov_b32 s59, 0')
        a.e(f's_branch L_predone_{name}')
        a.label(f'L_prewo_{name}')
        a.e('s_sub_u32 s44, s44, 1792')
        a.e('s_lshl_b32 s44, s44, 1')
        a.e('s_and_b32 s46, s44, 31')
        a.e('s_lshl_b32 s46, s46, 14')
        a.e('s_lshr_b32 s47, s44, 5')
        a.e('s_lshl_b32 s47, s47, 6')
        a.e('s_add_u32 s57, s46, s47')
        a.e('s_add_u32 s58, s57, 16384')
        srd(a, 48, 32, 33, D*D*2)
        a.e('s_lshl_b32 s45, s44, 10')
        a.e(f's_add_u32 s45, s45, {WS_WO}')
        a.e('s_add_u32 s46, s45, 1024')
        a.e('s_mov_b32 s59, 1')
        a.label(f'L_predone_{name}')
    def pre_dma():
        lb = a.newlabel('pb'); le = a.newlabel('pe')
        a.e('s_cmp_eq_u32 s59, 1')
        a.e(f's_cbranch_scc1 {lb}')
        for fr, (vo, sd, so) in enumerate([(96, 48, 57), (96, 52, 57), (97, 24, 58)]):
            a.e(f's_add_u32 m0, s56, {fr*1024}')
            a.e('s_nop 0')
            a.e(f'buffer_load_dwordx4 v{vo}, s[{sd}:{sd+3}], s{so} offen lds')
        a.e(f's_branch {le}')
        a.label(lb)
        for fr, so in enumerate([57, 58, 58]):
            a.e(f's_add_u32 m0, s56, {fr*1024}')
            a.e('s_nop 0')
            a.e(f'buffer_load_dwordx4 v97, s[48:51], s{so} offen lds')
        a.label(le)
    def pre_store():
        lb = a.newlabel('pb'); le = a.newlabel('pe')
        a.e('s_cmp_eq_u32 s59, 1')
        a.e(f's_cbranch_scc1 {lb}')
        for fr, (va, d2) in enumerate([(98, 128), (98, 128), (99, 256)]):
            a.e(f'ds_read_b64_tr_b16 {vr(104+4*fr,2)}, v{va} offset:{fr*1024}')
            a.e(f'ds_read_b64_tr_b16 {vr(106+4*fr,2)}, v{va} offset:{fr*1024+d2}')
        a.e('s_waitcnt lgkmcnt(0)')
        for fr in range(3):
            a.e(f'buffer_store_dwordx4 {vr(104+4*fr,4)}, v2, s[8:11], s{45+fr} offen')
        for r in range(4):
            a.e(f'v_mov_b32 v{116+r}, 0x3f803f80')
        a.e('s_nop 1')
        a.e('v_mfma_f32_16x16x32_bf16 v[120:123], v[104:107], v[116:119], 0')
        a.e('v_mfma_f32_16x16x32_bf16 v[124:127], v[108:111], v[116:119], 0')
        a.e('v_lshrrev_b32 v116, 4, v1')
        a.e('v_lshlrev_b32 v116, 4, v116')
        a.e('s_lshl_b32 s60, s44, 6')
        a.e(f's_add_u32 s61, s60, {WS_CSU}')
        a.e(f's_add_u32 s60, s60, {WS_CSG}')
        a.e('s_mov_b32 exec_lo, 0x00010001')
        a.e('s_mov_b32 exec_hi, 0x00010001')
        a.e('s_nop 4')
        a.e('buffer_store_dwordx4 v[120:123], v116, s[8:11], s60 offen')
        a.e('buffer_store_dwordx4 v[124:127], v116, s[8:11], s61 offen')
        a.e('s_mov_b64 exec, -1')
        a.e(f's_branch {le}')
        a.label(lb)
        for fr in range(2):
            a.e(f'ds_read_b64_tr_b16 {vr(104+4*fr,2)}, v100 offset:{fr*1024}')
            a.e(f'ds_read_b64_tr_b16 {vr(106+4*fr,2)}, v100 offset:{fr*1024+512}')
        a.e('s_waitcnt lgkmcnt(0)')
        for fr in range(2):
            a.e(f'buffer_store_dwordx4 {vr(104+4*fr,4)}, v2, s[8:11], s{45+fr} offen')
        a.label(le)
    VK, VV = 3, 88
    a.e(f'v_mov_b32 v{VK}, v2')
    a.e('v_and_b32 v89, 31, v1')
    a.e('v_lshrrev_b32 v90, 5, v1')
    a.e('v_lshlrev_b32 v90, 8, v90')
    a.e('v_lshl_add_u32 v90, v89, 4, v90')
    a.e('v_mov_b32 v91, 512')
    a.e('v_cmp_gt_u32 vcc, 16, v89')
    a.e('s_nop 1')
    a.e('v_cndmask_b32 v90, v91, v90, vcc')
    a.e(f'v_add_u32 v{VV}, 1024, v90')
    Q = 4; KR = [8, 12]; VR = [[16, 20], [24, 28]]; P = [32, 36]; SB = [40, 56]; O = 72
    for i in range(16):
        a.e(f'v_mov_b32 v{O+i}, 0')
    for i in range(4):
        a.e(f'v_mov_b32 v{P[1]+i}, 0')
        a.e(f'v_mov_b32 v{VR[1][1]+i}, 0')
    sched = 'E0 E1 PV1 LV1 E2 E3 C0 C1 E4 E5 W1 QK LV0 LK E6 E7 C2 C3 E8 E9 PV0 E10 E11 E12 E13 E14 E15 C4 C5 C6 C7'
    def tile(p, base):
        s_cur, s_nxt = SB[p], SB[1-p]
        o1 = (base+1)*KV_TILE; o2 = (base+2)*KV_TILE
        for op in sched.split():
            if op == 'LV0': a.e(f'ds_read_b128 {vr(VR[1-p][0],4)}, v{VV} offset:{o1}')
            elif op == 'LV1': a.e(f'ds_read_b128 {vr(VR[1-p][1],4)}, v{VV} offset:{o1+528}')
            elif op == 'LK': a.e(f'ds_read_b128 {vr(KR[p],4)}, v{VK} offset:{o2}')
            elif op[0] == 'W': a.e('s_waitcnt lgkmcnt(%s)' % op[1:])
            elif op == 'QK': a.e(f'v_mfma_f32_32x32x16_bf16 {vr(s_nxt,16)}, {vr(KR[1-p],4)}, {vr(Q,4)}, 0')
            elif op[0] == 'E':
                i = int(op[1:]); a.e(f'v_exp_f32 v{s_cur+i}, v{s_cur+i}')
            elif op[0] == 'C':
                i = int(op[1:]); a.e(f'v_cvt_pk_bf16_f32 v{P[i//4] + i % 4}, v{s_cur+2*i}, v{s_cur+2*i+1}')
            elif op == 'PV0': a.e(f'v_mfma_f32_32x32x16_bf16 {vr(O,16)}, {vr(VR[p][0],4)}, {vr(P[0],4)}, {vr(O,16)}')
            elif op == 'PV1': a.e(f'v_mfma_f32_32x32x16_bf16 {vr(O,16)}, {vr(VR[1-p][1],4)}, {vr(P[1],4)}, {vr(O,16)}')
    waits = [12, 8, 4, 0]
    for st in range(4):
        a.e(f's_waitcnt vmcnt({waits[st] + (NPRE if st in (1, 2) else 0)})')
        a.e('s_barrier')
        if st == 0 and prepass:
            pre_dma()
        if st == 0:
            dg.stamp()
            a.e(f'ds_read_b128 {vr(KR[0],4)}, v{VK} offset:0')
            a.e(f'ds_read_b128 {vr(VR[0][0],4)}, v{VV} offset:0')
            a.e(f'ds_read_b128 {vr(VR[0][1],4)}, v{VV} offset:528')
            a.e(f'ds_read_b128 {vr(KR[1],4)}, v{VK} offset:{KV_TILE}')
            a.e('s_waitcnt lgkmcnt(3)')
            a.e(f'v_mfma_f32_32x32x16_bf16 {vr(SB[0],16)}, {vr(KR[0],4)}, {vr(Q,4)}, 0')
            a.e('s_nop 15')
        if st == 3 and prepass:
            pre_store()
        for t in range(16):
            tile(t & 1, t)
        a.e(f'v_add_u32 v{VK}, {16*KV_TILE}, v{VK}')
        a.e(f'v_add_u32 v{VV}, {16*KV_TILE}, v{VV}')
    a.e('s_nop 1')
    a.e(f'v_mfma_f32_32x32x16_bf16 {vr(O,16)}, {vr(VR[1][1],4)}, {vr(P[1],4)}, {vr(O,16)}')
    dg.stamp()
    a.e('s_nop 15')
    a.e(f'v_rcp_f32 v{O+8}, v{O+8}')
    a.e('s_nop 0')
    for i in range(8):
        a.e(f'v_mul_f32 v{O+i}, v{O+i}, v{O+8}')
    for i in range(4):
        a.e(f'v_cvt_pk_bf16_f32 v{P[0]+i}, v{O+2*i}, v{O+2*i+1}')
    a.e(f's_add_u32 s20, s17, {WS_O}')
    a.e(f'buffer_store_dwordx4 {vr(P[0],4)}, v2, s[8:11], s20 offen')
    dg.finish(140 if diag else 0)
    a.e('s_waitcnt vmcnt(0)')
    a.label(f'L_exit_{name}')
    a.e('s_endpgm')
    return name, (168 if diag else 128), 100
K2_LDS = 163840
```

```python
from common import *

def gen_k4(a, diag=False, name='gu_kernel', kidx=3, V=None):
    V = V or {}
    DP = V.get('D', 6)
    a.cur = name
    dg = Diag(a, diag, kidx)
    kernel_header(a, name)
    a.e('s_cmp_ge_u32 s2, 256')
    a.e(f's_cbranch_scc1 L_exit_{name}')
    a.e(f's_load_dwordx2 s[4:5], s[0:1], {KA_WS}')
    dg.start()
    wave_ids(a)
    a.e('s_and_b32 s17, s2, 7')
    a.e('s_lshr_b32 s18, s2, 3')
    a.e('s_lshr_b32 s19, s18, 4')
    a.e('s_lshl_b32 s17, s17, 1')
    a.e('s_add_u32 s17, s17, s19')
    a.e('s_and_b32 s18, s18, 15')
    a.e('v_lshlrev_b32 v2, 4, v1')
    a.e('v_add_u32 v3, 65536, v2')
    a.e('v_and_b32 v6, 15, v1')
    a.e('v_lshrrev_b32 v7, 4, v1')
    a.e('s_mul_i32 s20, s18, 7')
    a.e('s_add_u32 s20, s20, s16')
    a.e('s_lshl_b32 s21, s20, 14')
    a.e(f's_add_u32 s22, s21, {WS_WU}')
    a.e(f's_add_u32 s21, s21, {WS_WG}')
    a.e('s_lshl_b32 s23, s17, 17')
    a.e('s_lshl_b32 s24, s16, 14')
    a.e('s_add_u32 s23, s23, s24')
    a.e(f's_add_u32 s23, s23, {WS_H}')
    a.e(f's_mov_b32 s42, {f32bits(1.0/512)}')
    a.e(f's_mov_b32 s43, {f32bits(1e-5)}')
    a.e('s_waitcnt lgkmcnt(0)')
    srd(a, 8, 4, 5, WS_USED)
    STT = 131072
    a.e('s_cmp_eq_u32 s16, 7')
    a.e(f's_cbranch_scc1 L_w7_{name}')
    A0 = 16
    BF = 144
    ACC = 176
    CT = 240
    a.e('v_lshlrev_b32 v8, 6, v6')
    a.e('v_lshl_add_u32 v8, v7, 4, v8')
    a.e('s_lshl_b32 s25, s20, 10')
    a.e(f's_add_u32 s26, s25, {WS_CSU}')
    a.e(f's_add_u32 s25, s25, {WS_CSG}')
    def group(ks):
        a.e('s_mov_b32 m0, s24')
        a.e('s_add_u32 s24, s24, 1024')
        a.e('buffer_load_dwordx4 v2, s[8:11], s23 offen lds')
        a.e('s_add_u32 s23, s23, 1024')
        a.e(f'buffer_load_dwordx4 {vr(A0+8*ks,4)}, v2, s[8:11], s21 offen')
        a.e(f'buffer_load_dwordx4 {vr(A0+8*ks+4,4)}, v2, s[8:11], s22 offen')
        a.e('s_add_u32 s21, s21, 1024')
        a.e('s_add_u32 s22, s22, 1024')
    for ks in range(DP):
        group(ks)
    for r in range(ACC, 240):
        a.e(f'v_mov_b32 v{r}, 0')
    dg.stamp()
    def bread(j, ks):
        va = 2 if j < 4 else 3
        a.e(f'ds_read_b128 {vr(BF+4*j,4)}, v{va} offset:{(j%4)*16384 + ks*1024}')
    issued = DP
    extra = 0
    def sync_for(last_needed):
        n_after = min(issued, 16) - 1 - last_needed
        a.e(f's_waitcnt vmcnt({3 * n_after + extra})')
        a.e('s_barrier')
    sync_for(1)
    dg.stamp()
    for j in range(8):
        bread(j, 0)
    for ks in range(16):
        if ks % 2 == 1 and ks < 15:
            sync_for(min(ks + 2, 15))
        for j in range(8):
            if j % 2 == 0:
                a.e(f's_waitcnt lgkmcnt({6 if ks < 15 else 6 - j})')
            a.e(f'v_mfma_f32_16x16x32_bf16 {vr(ACC+4*j,4)}, {vr(A0+8*ks,4)}, {vr(BF+4*j,4)}, {vr(ACC+4*j,4)}')
            a.e(f'v_mfma_f32_16x16x32_bf16 {vr(ACC+32+4*j,4)}, {vr(A0+8*ks+4,4)}, {vr(BF+4*j,4)}, {vr(ACC+32+4*j,4)}')
            if ks < 15:
                bread(j, ks + 1)
            if j == 3 and issued < 16:
                group(issued); issued += 1
            if j == 3 and issued == 16 and extra == 0 and ks >= 16 - DP:
                a.e(f'buffer_load_dwordx4 {vr(CT,4)}, v8, s[8:11], s25 offen')
                a.e(f'buffer_load_dwordx4 {vr(CT+4,4)}, v8, s[8:11], s26 offen')
                extra = 2
    dg.stamp()
    a.e('v_lshlrev_b32 v9, 3, v6')
    a.e(f'v_add_u32 v9, {STT}, v9')
    for j in range(8):
        a.e(f'ds_read_b64 {vr(32+2*j,2)}, v9 offset:{j*128}')
    a.e('v_lshrrev_b32 v10, 1, v7')
    a.e('v_lshlrev_b32 v10, 5, v10')
    a.e('v_add_u32 v10, v10, v6')
    a.e('v_lshlrev_b32 v10, 4, v10')
    a.e('v_and_b32 v11, 1, v7')
    a.e('v_lshl_add_u32 v10, v11, 3, v10')
    a.e('s_mul_i32 s25, s17, 448')
    a.e('s_add_u32 s25, s25, s20')
    a.e('s_lshl_b32 s25, s25, 10')
    a.e(f's_add_u32 s25, s25, {WS_ACT}')
    a.e('s_waitcnt vmcnt(0)')
    for sh in (8, 4, 2, 1):
        for r in range(8):
            a.e(f'v_add_f32_dpp v{CT+r}, v{CT+r}, v{CT+r} row_ror:{sh} row_mask:0xf bank_mask:0xf')
    a.e('s_waitcnt lgkmcnt(0)')
    for j in range(8):
        mean, r2 = 32 + 2*j, 33 + 2*j
        g0, u0 = ACC + 4*j, ACC + 32 + 4*j
        for r in range(4):
            a.e(f'v_fma_f32 v{g0+r}, -v{mean}, v{CT+r}, v{g0+r}')
            a.e(f'v_fma_f32 v{u0+r}, -v{mean}, v{CT+4+r}, v{u0+r}')
        for r in range(4):
            a.e(f'v_max_f32 v{g0+r}, 0, v{g0+r}')
            a.e(f'v_mul_f32 v{u0+r}, v{u0+r}, v{r2}')
        for r in range(4):
            a.e(f'v_mul_f32 v{g0+r}, v{g0+r}, v{u0+r}')
        a.e(f'v_cvt_pk_bf16_f32 v{48+2*j}, v{g0}, v{g0+1}')
        a.e(f'v_cvt_pk_bf16_f32 v{49+2*j}, v{g0+2}, v{g0+3}')
        a.e(f'buffer_store_dwordx2 {vr(48+2*j,2)}, v10, s[8:11], s25 offen offset:{(j&1)*256}')
        if j & 1:
            a.e(f's_add_u32 s25, s25, {112*1024}')
    a.e(f's_branch L_done_{name}')
    a.label(f'L_w7_{name}')
    n_main = dg.n; dg.n = 1
    a.e('s_lshl_b32 s25, s17, 7')
    a.e('v_add_u32 v8, s25, v1')
    a.e('v_lshlrev_b32 v8, 6, v8')
    a.e(f's_mov_b32 s26, {WS_ST}')
    def dma7():
        a.e('s_mov_b32 m0, s24')
        a.e('s_add_u32 s24, s24, 1024')
        a.e('buffer_load_dwordx4 v2, s[8:11], s23 offen lds')
        a.e('s_add_u32 s23, s23, 1024')
    for ks in range(4): dma7()
    for u in range(2):
        for i in range(4):
            a.e(f'buffer_load_dwordx4 {vr(16+16*u+4*i,4)}, v8, s[8:11], s26 offen offset:{16*i}')
        a.e(f's_add_u32 s26, s26, {64*64}')
    for ks in range(4, 16): dma7()
    dg.stamp()
    a.e(f's_waitcnt vmcnt({8 + 14})')
    a.e('s_barrier')
    dg.stamp()
    for ks in range(1, 15, 2):
        need = min(ks + 2, 15)
        n_after = 15 - need + (8 if need < 4 else 0)
        a.e(f's_waitcnt vmcnt({n_after})' + (' lgkmcnt(0)' if ks == 13 else ''))
        a.e('s_barrier')
        if ks == 3:
            for u in range(2):
                b = 16 + 16*u
                for i in range(1, 8):
                    a.e(f'v_add_f32 v{b}, v{b}, v{b+2*i}')
                    a.e(f'v_add_f32 v{b+1}, v{b+1}, v{b+2*i+1}')
                a.e(f'v_mul_f32 v{b}, s42, v{b}')
                a.e(f'v_mul_f32 v{b+1}, s42, v{b+1}')
                a.e(f'v_fma_f32 v{b+1}, -v{b}, v{b}, v{b+1}')
                a.e(f'v_max_f32 v{b+1}, 0, v{b+1}')
                a.e(f'v_add_f32 v{b+1}, s43, v{b+1}')
                a.e(f'v_rcp_f32 v{b+1}, v{b+1}')
            a.e('v_lshlrev_b32 v9, 3, v1')
            a.e(f'v_add_u32 v9, {STT}, v9')
            a.e('s_nop 0')
            a.e('ds_write_b64 v9, v[16:17]')
            a.e('ds_write_b64 v9, v[32:33] offset:512')
    dg.stamp()
    dg.n = n_main
    a.label(f'L_done_{name}')
    dg.finish(0 if not diag else 60)
    a.e('s_waitcnt vmcnt(0)')
    a.label(f'L_exit_{name}')
    a.e('s_endpgm')
    return name, 248, 100
K4_LDS = 131072 + 1024
```

```python
import sys
from common import *
from gen_k1 import gen_k1, K1_LDS
from gen_k2 import gen_k2, K2_LDS
from gen_gemm64 import gen_gemm64, G64_LDS
from gen_k4 import gen_k4, K4_LDS
from gen_fused import gen_fused, FUSED_LDS
HEADER = open('sequential_preLN__grouped_kv_mqa__glu_gated_reglu__prompt.s.ref').read().split('; Override launch')[0]
def build(diag, path):
    a = Asm()
    a(HEADER.rstrip('\n'))
    a(f'; @launch kernel=qkv_kernel grid=(256,1,1) block=(512,1,1) lds={K1_LDS}')
    a(f'; @launch kernel=attn_kernel grid=(256,1,1) block=(512,1,1) lds={K2_LDS}')
    a(f'; @launch kernel=wo_kernel grid=(256,1,1) block=(512,1,1) lds={G64_LDS}')
    a(f'; @launch kernel=gu_kernel grid=(256,1,1) block=(512,1,1) lds={K4_LDS}')
    a(f'; @launch kernel=down_kernel grid=(256,1,1) block=(512,1,1) lds={G64_LDS}')
    a('.amdgcn_target "amdgcn-amd-amdhsa--gfx950"')
    a('.text')
    ds = [gen_k1(a, diag, kidx=0), gen_k2(a, diag, kidx=1), gen_gemm64(a, 'wo', diag, kidx=2), gen_k4(a, diag, kidx=3), gen_gemm64(a, 'down', diag, kidx=4)]
    a('.section .rodata,"a"')
    for n, nv, ns in ds:
        a(kernel_desc(n, nv, ns))
    open(path, 'w').write(a.text())
if __name__ == '__main__':
    build(True, 'full_diag.s')
    build(False, 'full.s')

def build_fused(diag, path):
    a = Asm()
    a(HEADER.rstrip('\n'))
    a(f'; @launch kernel=qkv_kernel grid=(256,1,1) block=(512,1,1) lds={K1_LDS}')
    a(f'; @launch kernel=fused_kernel grid=(256,1,1) block=(512,1,1) lds={FUSED_LDS}')
    a('.amdgcn_target "amdgcn-amd-amdhsa--gfx950"')
    a('.text')
    ds = [gen_k1(a, diag, kidx=0), gen_fused(a, diag, kidx=1)]
    a('.section .rodata,"a"')
    for n, nv, ns in ds:
        a(kernel_desc(n, nv, ns))
    open(path, 'w').write(a.text())
if __name__ == '__main__':
    build_fused(True, 'fused_diag.s')
    build_fused(False, 'fused.s')
```

```python
from asmlib import *
from layout import *

KA_X, KA_WQ, KA_WK, KA_WV, KA_WO, KA_BX, KA_WG, KA_WU, KA_WD, KA_OUT, KA_DBG, KA_WS = [8*i for i in range(12)]

def srd(a, dst, lo, hi, nbytes, add=0):
    if add:
        a.e(f's_add_u32 s{dst}, s{lo}, {add}')
        a.e(f's_addc_u32 s{dst+1}, s{hi}, 0')
        a.e(f's_and_b32 s{dst+1}, s{dst+1}, 0xffff')
    else:
        a.e(f's_mov_b32 s{dst}, s{lo}')
        a.e(f's_and_b32 s{dst+1}, s{hi}, 0xffff')
    a.e(f's_mov_b32 s{dst+2}, {nbytes}')
    a.e(f's_mov_b32 s{dst+3}, 0x00020000')

def red_g(a, x, tmp):
    a.e(f'v_mov_b32 v{tmp}, v{x}')
    a.e('s_nop 1')
    a.e(f'v_permlane32_swap_b32 v{x}, v{tmp}')
    a.e('s_nop 0')
    a.e(f'v_add_f32 v{x}, v{x}, v{tmp}')
    a.e(f'v_mov_b32 v{tmp}, v{x}')
    a.e('s_nop 1')
    a.e(f'v_permlane16_swap_b32 v{x}, v{tmp}')
    a.e('s_nop 0')
    a.e(f'v_add_f32 v{x}, v{x}, v{tmp}')

def red_g_multi(a, xs, tmps, op='v_add_f32'):
    for x, t in zip(xs, tmps): a.e(f'v_mov_b32 v{t}, v{x}')
    a.e('s_nop 1')
    for x, t in zip(xs, tmps): a.e(f'v_permlane32_swap_b32 v{x}, v{t}')
    a.e('s_nop 1')
    for x, t in zip(xs, tmps): a.e(f'{op} v{x}, v{x}, v{t}')
    a.e('s_nop 0')
    for x, t in zip(xs, tmps): a.e(f'v_mov_b32 v{t}, v{x}')
    a.e('s_nop 1')
    for x, t in zip(xs, tmps): a.e(f'v_permlane16_swap_b32 v{x}, v{t}')
    a.e('s_nop 1')
    for x, t in zip(xs, tmps): a.e(f'{op} v{x}, v{x}, v{t}')

def wave_ids(a, swave=16, vlane=1, vtmp=2):
    a.e(f'v_lshrrev_b32 v{vtmp}, 6, v0')
    a.e(f'v_and_b32 v{vlane}, 63, v0')
    a.e('s_nop 0')
    a.e(f'v_readfirstlane_b32 s{swave}, v{vtmp}')

def map_tb_hg(a, stb, shg, stmp):
    a.e(f's_and_b32 s{stb}, s2, 7')
    a.e(f's_lshr_b32 s{shg}, s2, 3')
    a.e(f's_lshr_b32 s{stmp}, s{shg}, 3')
    a.e(f's_lshl_b32 s{stb}, s{stb}, 2')
    a.e(f's_add_u32 s{stb}, s{stb}, s{stmp}')
    a.e(f's_and_b32 s{shg}, s{shg}, 7')

class Diag:
    def __init__(self, a, on, kidx, sbase=64):
        self.a, self.on, self.kidx, self.n = a, on, kidx, 0
    def start(self):
        if not self.on: return
        self.a.e('s_memrealtime s[92:93]')
        self.a.e('s_memtime s[94:95]')
        self.n = 1
    def stamp(self):
        if not self.on: return
        self.a.e('s_memtime s[96:97]')
        self.a.e('s_waitcnt lgkmcnt(0)')
        self.a.e(f'v_writelane_b32 v0, s96, {4 + self.n}')
        self.n += 1
    def finish(self, vtmp, swave=16, srd_ws=8, nw=8):
        if not self.on: return
        a = self.a
        self.stamp()
        a.e('s_memrealtime s[96:97]')
        a.e('s_waitcnt lgkmcnt(0)')
        a.e('v_writelane_b32 v0, s92, 0')
        a.e('v_writelane_b32 v0, s96, 1')
        a.e(f's_mov_b32 s96, {self.n}')
        a.e('v_writelane_b32 v0, s96, 2')
        a.e('v_writelane_b32 v0, s94, 4')
        a.e('s_lshl_b32 s96, s2, 4')
        a.e(f's_add_u32 s96, s96, s{swave}')
        a.e('s_lshl_b32 s96, s96, 8')
        a.e(f's_add_u32 s96, s96, {WS_DBG + self.kidx * 1024 * 1024}')
        a.e(f'v_lshlrev_b32 v{vtmp}, 2, v1')
        a.e(f'buffer_store_dword v0, v{vtmp}, s[{srd_ws}:{srd_ws+3}], s96 offen')

class VM:
    def __init__(self, a):
        self.a = a; self.ops = []
    def op(self, line, tag=None):
        self.a.e(line); self.ops.append(tag)
    def mark(self, tag):
        self.ops.append(tag)
    def count_after(self, tag):
        idx = max(i for i, t in enumerate(self.ops) if t == tag)
        return len(self.ops) - 1 - idx
    def wait(self, tag, extra=''):
        n = self.count_after(tag)
        assert n <= 63, n
        self.a.e(f's_waitcnt vmcnt({n}){extra}')
    def wait_all(self, extra=''):
        self.a.e(f's_waitcnt vmcnt(0){extra}')
        self.ops = []

SPIN_MAX = 200000
def poll_flags(a, vflag, vaddr, srd, soff, nlanes, sctr, value_s=None, tmp_exec=None):
    lp = a.newlabel('poll'); dn = a.newlabel('pdone')
    a.e(f's_mov_b32 s{sctr}, 0')
    a.e(f's_mov_b64 exec, {hex((1 << nlanes) - 1)}' if nlanes <= 32 else 's_mov_b64 exec, -1')
    a.label(lp)
    a.e(f'buffer_load_dword v{vflag}, v{vaddr}, s[{srd}:{srd+3}], s{soff} offen sc1')
    a.e(f's_add_u32 s{sctr}, s{sctr}, 1')
    a.e('s_waitcnt vmcnt(0)')
    a.e(f'v_cmp_ne_u32 vcc, 1, v{vflag}')
    a.e(f's_cmp_gt_u32 s{sctr}, {SPIN_MAX}')
    a.e(f's_cbranch_scc1 {dn}')
    a.e(f's_cbranch_vccnz {lp}')
    a.label(dn)
    a.e('s_mov_b64 exec, -1')
```

```python
from common import *

F_O   = WS_FLAG
F_H   = WS_FLAG + 32768
F_A   = WS_FLAG + 65536
F_PRE = WS_FLAG + 98304
F_KV  = WS_FLAG + 131072
MONO_LDS = 163840
PRE_LDS = 139264
NONCE = 62

def poll_nonce(a, vflag, vaddr, srd, soff, nlanes, sctr):
    lp = a.newlabel('poll'); dn = a.newlabel('pdone')
    a.e(f's_mov_b32 s{sctr}, 0')
    if nlanes < 64: a.e(f's_mov_b64 exec, {hex((1 << nlanes) - 1)}')
    a.label(lp)
    a.e(f'buffer_load_dword v{vflag}, v{vaddr}, s[{srd}:{srd+3}], s{soff} offen sc1')
    a.e(f's_add_u32 s{sctr}, s{sctr}, 1')
    a.e('s_waitcnt vmcnt(0)')
    a.e(f'v_cmp_ne_u32 vcc, s{NONCE}, v{vflag}')
    a.e(f's_cmp_gt_u32 s{sctr}, {SPIN_MAX}')
    a.e(f's_cbranch_scc1 {dn}')
    a.e(f's_cbranch_vccnz {lp}')
    a.label(dn)
    if nlanes < 64: a.e('s_mov_b64 exec, -1')

def any_sentinel(a, regs, tmp):
    regs = list(regs)
    a.e(f'v_max3_u32 v{tmp}, v{regs[0]}, v{regs[1]}, v{regs[2]}')
    i = 3
    while i < len(regs):
        if i + 1 < len(regs):
            a.e(f'v_max3_u32 v{tmp}, v{tmp}, v{regs[i]}, v{regs[i+1]}'); i += 2
        else:
            a.e(f'v_max_u32 v{tmp}, v{tmp}, v{regs[i]}'); i += 1
    a.e(f'v_cmp_eq_u32 vcc, -1, v{tmp}')

def spin_until_valid(a, emit_loads, regs, tmp, sctr, sleep=1):
    lp = a.newlabel('sv'); dn = a.newlabel('svd')
    a.e(f's_mov_b32 s{sctr}, 0')
    a.label(lp)
    emit_loads()
    a.e(f's_add_u32 s{sctr}, s{sctr}, 1')
    a.e('s_waitcnt vmcnt(0)')
    any_sentinel(a, regs, tmp) if len(regs) >= 3 else (a.e(f'v_cmp_eq_u32 vcc, -1, v{regs[0]}'))
    a.e(f's_cmp_gt_u32 s{sctr}, {SPIN_MAX}')
    a.e(f's_cbranch_scc1 {dn}')
    a.e(f's_cbranch_vccz {dn}')
    if sleep: a.e(f's_sleep {sleep}')
    a.e(f's_branch {lp}')
    a.label(dn)

def gen_mono(a, diag=False, name='mono_kernel', kidx=0, V=None):
    V = V or {}
    a.cur = name
    dg = Diag(a, diag, kidx, sbase=64)
    kernel_header(a, name)
    a.e('s_cmp_ge_u32 s2, 256')
    a.e(f's_cbranch_scc1 L_exit_{name}')
    a.e(f's_load_dwordx2 s[4:5], s[0:1], {KA_WS}')
    a.e(f's_load_dwordx2 s[6:7], s[0:1], {KA_X}')
    a.e(f's_load_dwordx2 s[58:59], s[0:1], {KA_WQ}')
    a.e(f's_load_dwordx4 s[52:55], s[0:1], {KA_WK}')
    a.e(f's_load_dwordx2 s[60:61], s[0:1], {KA_DBG}')
    a.e(f's_load_dwordx2 s[32:33], s[0:1], {KA_WO}')
    a.e(f's_load_dwordx4 s[36:39], s[0:1], {KA_WG}')
    a.e(f's_load_dwordx4 s[40:43], s[0:1], {KA_WD}')
    dg.start()
    wave_ids(a)
    a.e('s_and_b32 s17, s2, 7')
    a.e('s_lshr_b32 s18, s2, 3')
    a.e('s_and_b32 s19, s18, 3')
    a.e('s_lshl_b32 s17, s17, 2')
    a.e('s_add_u32 s17, s17, s19')
    a.e('s_lshr_b32 s18, s18, 2')
    a.e('s_lshl_b32 s19, s17, 3')
    a.e('s_add_u32 s19, s19, s18')
    a.e('v_and_b32 v6, 15, v1')
    a.e('v_lshrrev_b32 v7, 4, v1')
    a.e('v_lshrrev_b32 v8, 3, v1')
    a.e('v_and_b32 v9, 7, v1')
    a.e('v_xor_b32 v10, v9, v7')
    a.e('v_xor_b32 v11, 4, v10')
    a.e('v_lshlrev_b32 v12, 10, v8')
    a.e('v_lshl_add_u32 v2, v10, 4, v12')
    a.e('v_lshl_add_u32 v13, v11, 4, v12')
    a.e('v_lshrrev_b32 v10, 1, v9')
    a.e('v_bfe_u32 v11, v1, 4, 1')
    a.e('v_xor_b32 v10, v10, v11')
    a.e('v_xor_b32 v11, 2, v10')
    a.e('v_and_b32 v9, 1, v9')
    a.e('v_lshl_or_b32 v10, v10, 1, v9')
    a.e('v_lshl_or_b32 v11, v11, 1, v9')
    a.e('v_lshl_add_u32 v3, v10, 4, v12')
    a.e('v_lshl_add_u32 v4, v11, 4, v12')
    a.e('v_lshlrev_b32 v5, 4, v1')
    a.e('s_lshr_b32 s21, s16, 1')
    a.e('s_and_b32 s22, s16, 1')
    a.e('s_lshl_b32 s22, s22, 2')
    a.e('s_lshl_b32 s23, s17, 2')
    a.e('s_add_u32 s23, s23, s21')
    a.e('s_lshl_b32 s23, s23, 14')
    a.e('s_lshl_b32 s44, s22, 7')
    a.e('s_add_u32 s44, s44, s23')
    a.e('s_lshl_b32 s45, s21, 14')
    a.e('s_lshl_b32 s23, s22, 11')
    a.e('s_add_u32 s45, s45, s23')
    a.e('s_and_b32 s21, s16, 3')
    a.e('s_lshr_b32 s22, s16, 2')
    a.e('s_lshl_b32 s22, s22, 3')
    a.e('s_add_u32 s21, s21, s22')
    a.e('s_lshl_b32 s46, s21, 15')
    a.e('s_lshl_b32 s22, s18, 7')
    a.e('s_add_u32 s46, s46, s22')
    a.e('s_lshl_b32 s47, s21, 12')
    a.e('s_add_u32 s47, s47, 65536')
    a.e('s_waitcnt lgkmcnt(0)')
    dg.stamp()
    srd(a, 8, 4, 5, WS_USED)
    srd(a, 12, 6, 7, S*D*2)
    srd(a, 20, 58, 59, D*D*2)
    a.e('s_and_b32 s28, s18, 1')
    a.e('s_cmp_eq_u32 s28, 0')
    a.e('s_cselect_b32 s28, s52, s54')
    a.e('s_cselect_b32 s29, s53, s55')
    srd(a, 24, 28, 29, D*DH*2)
    srd(a, 48, 60, 61, 256)
    vm = VM(a)
    ln = a.newlabel('nn')
    a.e('s_or_b32 s28, s2, s16')
    a.e('s_cmp_lg_u32 s28, 0')
    a.e(f's_cbranch_scc1 {ln}')
    a.e('s_memrealtime s[28:29]')
    a.e('s_waitcnt lgkmcnt(0)')
    a.e('s_lshl_b32 s28, s28, 1')
    a.e('s_or_b32 s28, s28, 1')
    a.e('s_bitset0_b32 s28, 31')
    a.e('v_mov_b32 v14, s28')
    a.e('v_mov_b32 v15, 0')
    a.e('s_mov_b64 exec, 1')
    a.e('buffer_store_dword v14, v15, s[48:51], 0 offen sc1')
    a.e('s_mov_b64 exec, -1')
    a.label(ln)
    a.e('s_lshl_b32 s28, s16, 11')
    a.e('s_add_u32 s29, s28, 131072')
    for i in range(2):
        a.e('s_mov_b32 m0, s29')
        a.e('s_add_u32 s29, s29, 1024')
        vm.op('buffer_load_dwordx4 v5, s[24:27], s28 offen lds', 'wkv')
        a.e('s_add_u32 s28, s28, 1024')
    for stg in range(2):
        for kp in range(2):
            for half in range(2):
                a.e('s_mov_b32 m0, s45')
                a.e('s_add_u32 s45, s45, 1024')
                if half == 1: a.e('s_add_u32 s28, s44, 8192')
                vm.op(f'buffer_load_dwordx4 v{2 if half == 0 else 13}, s[12:15], s{44 if half == 0 else 28} offen lds', f'x{stg}')
            a.e('s_add_u32 s44, s44, 128')
    for stg in range(2):
        for i in range(4):
            a.e('s_mov_b32 m0, s47')
            a.e('s_add_u32 s47, s47, 1024')
            vm.op(f'buffer_load_dwordx4 v{3 + (i & 1)}, s[20:23], s46 offen lds', f'wq{stg}')
            a.e('s_add_u32 s46, s46, 8192')
        if stg == 0:
            a.e(f's_add_u32 s46, s46, {4*32768 - 4*8192}')
            a.e(f's_add_u32 s47, s47, {4*4096 - 4*1024}')
    a.e('v_mov_b32 v15, 0')
    vm.op('buffer_load_dword v125, v15, s[48:51], 0 offen sc1', 'nonce')
    dg.stamp()
    FG, KH = 30, 31
    a.e(f's_and_b32 s{FG}, s16, 3')
    a.e(f's_lshr_b32 s{KH}, s16, 2')
    VTR, VBE, VBO, VSE, VSO, VKA = 12, 13, 14, 15, 3, 4
    a.e('v_lshrrev_b32 v8, 2, v6')
    a.e('v_and_b32 v9, 3, v1')
    a.e('v_lshrrev_b32 v10, 1, v8')
    a.e('v_and_b32 v11, 1, v7')
    a.e('v_lshl_or_b32 v10, v11, 1, v10')
    a.e(f'v_xor_b32 v10, s{FG}, v10')
    a.e('v_lshl_add_u32 v11, v7, 3, v8')
    a.e('v_lshlrev_b32 v16, 7, v11')
    a.e('v_lshl_add_u32 v16, v10, 5, v16')
    a.e('v_lshl_add_u32 v16, v9, 3, v16')
    a.e(f's_lshl_b32 s28, s{KH}, 15')
    a.e('s_add_u32 s28, s28, 65536')
    a.e(f'v_add_u32 v{VTR}, s28, v16')
    a.e('v_lshlrev_b32 v16, 5, v11')
    a.e('v_lshl_add_u32 v16, v9, 3, v16')
    a.e(f's_lshl_b32 s28, s{KH}, 13')
    a.e('s_add_u32 s28, s28, 131072')
    a.e(f'v_add_u32 v{VKA}, s28, v16')
    a.e('v_lshrrev_b32 v16, 1, v6')
    a.e('v_xor_b32 v16, v16, v7')
    a.e('v_lshlrev_b32 v16, 4, v16')
    a.e('v_lshl_add_u32 v16, v6, 7, v16')
    a.e(f's_lshl_b32 s28, s{KH}, 13')
    a.e(f'v_add_u32 v{VBE}, s28, v16')
    a.e(f'v_xor_b32 v{VBO}, 64, v{VBE}')
    a.e(f's_lshl_b32 s29, s{FG}, 14')
    a.e(f'v_add_u32 v{VSE}, s29, v{VBE}')
    a.e(f'v_add_u32 v{VSO}, s29, v{VBO}')
    AF = [40, 44]; BF = [48, 68]; KA = [16, 20]; SF = [28, 32]
    ACC = 88; TCS, TSUM, TSQ = 104, 108, 112
    KACC, KCS = 116, 120; ONES = 24
    for r in range(ACC, 124): a.e(f'v_mov_b32 v{r}, 0')
    for r in range(4): a.e(f'v_mov_b32 v{ONES+r}, 0x3f803f80')
    def mf(d, x, y): a.e(f'v_mfma_f32_16x16x32_bf16 {vr(d,4)}, {vr(x,4)}, {vr(y,4)}, {vr(d,4)}')
    vm.wait('x0')
    a.e('s_barrier')
    dg.stamp()
    def reads1(i):
        s = i & 1
        vs = VSE if i % 2 == 0 else VSO
        a.e(f'ds_read_b128 {vr(SF[s],4)}, v{vs} offset:{(i>>1)*2048}')
        a.e(f'ds_read_b64_tr_b16 {vr(KA[s],2)}, v{VKA} offset:{i*1024}')
        a.e(f'ds_read_b64_tr_b16 {vr(KA[s]+2,2)}, v{VKA} offset:{i*1024+128}')
    reads1(0)
    for i in range(8):
        s = i & 1
        if i == 3:
            vm.wait('x1')
            a.e('s_barrier')
        if i < 7:
            reads1(i + 1)
            a.e('s_waitcnt lgkmcnt(3)')
        else:
            a.e('s_waitcnt lgkmcnt(0)')
        mf(KACC, KA[s], SF[s])
        mf(TSUM, ONES, SF[s])
        mf(TSQ, SF[s], SF[s])
        mf(KCS, KA[s], ONES)
    dg.stamp()
    a.e('v_and_b32 v8, 3, v6')
    a.e('v_lshrrev_b32 v9, 2, v6')
    a.e('s_nop 5')
    for k in (1, 2, 3):
        a.e(f'v_cmp_eq_u32 vcc, {k}, v8')
        a.e('s_nop 1')
        a.e(f'v_cndmask_b32 v{TSQ}, v{TSQ}, v{TSQ+k}, vcc')
    a.e('v_cmp_eq_u32 vcc, v9, v7')
    a.e('s_nop 1')
    a.e(f'v_cndmask_b32 v{TSUM+1}, 0, v{TSQ}, vcc')
    red_g(a, TSUM+1, 16)
    KVP, KCSB, ST = 147456, 155648, 156160
    a.e('s_lshl_b32 s28, s16, 10')
    a.e(f's_add_u32 s28, s28, {KVP}')
    a.e('v_add_u32 v9, s28, v5')
    a.e(f'ds_write_b128 v9, {vr(KACC,4)}')
    a.e('s_lshl_b32 s28, s16, 6')
    a.e(f's_add_u32 s28, s28, {KCSB}')
    a.e('v_lshlrev_b32 v11, 4, v7')
    a.e('v_add_u32 v9, s28, v11')
    a.e(f's_lshl_b32 s28, s{FG}, 1')
    a.e(f's_add_u32 s28, s28, s{KH}')
    a.e('s_lshl_b32 s29, s28, 7')
    a.e(f's_add_u32 s29, s29, {ST}')
    a.e('v_lshlrev_b32 v10, 3, v6')
    a.e('v_add_u32 v10, s29, v10')
    a.e('s_mov_b32 exec_lo, 0x00010001')
    a.e('s_mov_b32 exec_hi, 0x00010001')
    a.e(f'ds_write_b128 v9, {vr(KCS,4)}')
    a.e('s_mov_b64 exec, 0xffff')
    a.e(f'ds_write_b64 v10, {vr(TSUM,2)}')
    a.e('s_mov_b64 exec, -1')
    a.e('s_waitcnt lgkmcnt(0)')
    a.e('s_barrier')
    dg.stamp()
    a.e(f's_mov_b32 s44, {f32bits(1.0/512)}')
    a.e(f's_mov_b32 s45, {f32bits(1e-5)}')
    a.e(f's_mov_b32 s46, {f32bits(QSCALE)}')
    def ln_stats(b, mean, rstd):
        a.e(f'v_add_f32 v{b}, v{b}, v{b+2}')
        a.e(f'v_add_f32 v{b+1}, v{b+1}, v{b+3}')
        a.e(f'v_mul_f32 v{mean}, s44, v{b}')
        a.e(f'v_mul_f32 v{b+1}, s44, v{b+1}')
        a.e(f'v_fma_f32 v{b+1}, -v{mean}, v{mean}, v{b+1}')
        a.e(f'v_max_f32 v{b+1}, 0, v{b+1}')
        a.e(f'v_add_f32 v{b+1}, s45, v{b+1}')
        a.e(f'v_rsq_f32 v{rstd}, v{b+1}')
    a.e('v_lshrrev_b32 v126, 1, v7')
    a.e('v_lshlrev_b32 v126, 5, v126')
    a.e('v_add_u32 v126, v126, v6')
    a.e('v_lshlrev_b32 v126, 4, v126')
    a.e('v_and_b32 v17, 1, v7')
    a.e('v_lshl_add_u32 v126, v17, 3, v126')
    lkv = a.newlabel('nokv')
    a.e('s_cmp_ge_u32 s18, 2')
    a.e(f's_cbranch_scc1 {lkv}')
    a.e(f's_cmp_lg_u32 s{KH}, 0')
    a.e(f's_cbranch_scc1 {lkv}')
    a.e(f's_lshl_b32 s28, s{FG}, 10')
    a.e(f's_add_u32 s28, s28, {KVP}')
    a.e('v_add_u32 v9, s28, v5')
    a.e('ds_read_b128 v[40:43], v9')
    a.e('ds_read_b128 v[44:47], v9 offset:4096')
    a.e(f's_lshl_b32 s28, s{FG}, 6')
    a.e(f's_add_u32 s28, s28, {KCSB}')
    a.e('v_add_u32 v9, s28, v11')
    a.e('ds_read_b128 v[48:51], v9')
    a.e('ds_read_b128 v[52:55], v9 offset:256')
    a.e(f's_lshl_b32 s29, s{FG}, 8')
    a.e(f's_add_u32 s29, s29, {ST}')
    a.e('v_lshlrev_b32 v10, 3, v6')
    a.e('v_add_u32 v10, s29, v10')
    a.e('ds_read_b64 v[56:57], v10')
    a.e('ds_read_b64 v[58:59], v10 offset:128')
    a.e('s_waitcnt lgkmcnt(0)')
    for r in range(4):
        a.e(f'v_add_f32 v{40+r}, v{40+r}, v{44+r}')
        a.e(f'v_add_f32 v{48+r}, v{48+r}, v{52+r}')
    ln_stats(56, 72, 74)
    a.e('s_nop 0')
    for r in range(4):
        a.e(f'v_fma_f32 v{40+r}, -v72, v{48+r}, v{40+r}')
        a.e(f'v_mul_f32 v{40+r}, v{40+r}, v74')
    a.e('v_cvt_pk_bf16_f32 v76, v40, v41')
    a.e('v_cvt_pk_bf16_f32 v77, v42, v43')
    a.e('s_lshl_b32 s47, s17, 2')
    a.e(f's_add_u32 s47, s47, s{FG}')
    a.e('s_lshr_b32 s28, s47, 1')
    a.e(f's_mul_i32 s28, s28, {KV_TILE}')
    a.e(f's_add_u32 s28, s28, {WS_KV}')
    a.e('s_and_b32 s29, s47, 1')
    lv = a.newlabel('isv')
    a.e('s_cmp_eq_u32 s18, 1')
    a.e(f's_cbranch_scc1 {lv}')
    a.e('s_lshl_b32 s29, s29, 8')
    a.e('s_add_u32 s28, s28, s29')
    a.e('buffer_store_dwordx2 v[76:77], v126, s[8:11], s28 offen sc1')
    lmx = a.newlabel('mx')
    a.e(f's_branch {lmx}')
    a.label(lv)
    a.e('s_mul_i32 s29, s29, 528')
    a.e('s_add_u32 s28, s28, s29')
    a.e('s_add_u32 s28, s28, 1024')
    a.e('v_bfe_u32 v44, v6, 2, 1')
    a.e('v_lshlrev_b32 v44, 8, v44')
    a.e('v_lshl_add_u32 v44, v7, 6, v44')
    a.e('v_and_b32 v45, 3, v6')
    a.e('v_lshrrev_b32 v46, 3, v6')
    a.e('v_lshl_add_u32 v45, v46, 2, v45')
    a.e('v_lshl_add_u32 v44, v45, 1, v44')
    a.e('buffer_store_short v76, v44, s[8:11], s28 offen sc1')
    a.e('buffer_store_short_d16_hi v76, v44, s[8:11], s28 offen offset:16 sc1')
    a.e('buffer_store_short v77, v44, s[8:11], s28 offen offset:32 sc1')
    a.e('buffer_store_short_d16_hi v77, v44, s[8:11], s28 offen offset:48 sc1')
    for r in range(4): a.e(f'v_mov_b32 v{48+r}, 0x3f803f80')
    a.e('v_mov_b32 v45, 0')
    a.e('s_mov_b64 exec, 1')
    a.e('buffer_store_dwordx4 v[48:51], v45, s[8:11], s28 offen offset:512 sc1')
    a.e('s_mov_b64 exec, -1')
    a.label(lmx)
    a.e('v_mov_b32 v44, 0')
    a.e('v_dot2_f32_bf16 v44, v76, v76, v44')
    a.e('v_dot2_f32_bf16 v44, v77, v77, v44')
    a.e('s_nop 2')
    red_g(a, 44, 45)
    for sh in (8, 4, 2, 1):
        a.e('s_nop 1')
        a.e(f'v_max_f32_dpp v44, v44, v44 row_ror:{sh} row_mask:0xf bank_mask:0xf')
    a.e('s_lshl_b32 s29, s18, 7')
    a.e('s_add_u32 s47, s47, s29')
    a.e('s_lshl_b32 s47, s47, 2')
    a.e(f's_add_u32 s47, s47, {WS_KMAX}')
    a.e('v_mov_b32 v45, 0')
    a.e('s_mov_b64 exec, 1')
    a.e('buffer_store_dword v44, v45, s[8:11], s47 offen sc1')
    a.e('s_mov_b64 exec, -1')
    a.label(lkv)
    a.e('s_waitcnt vmcnt(0)')
    a.e('s_barrier')
    dg.stamp()
    lnz = a.newlabel('nz'); lno = a.newlabel('nok')
    a.e('s_mov_b32 s28, 0')
    a.label(lnz)
    a.e(f'v_readfirstlane_b32 s{NONCE}, v125')
    a.e('s_add_u32 s28, s28, 1')
    a.e(f's_cmp_lg_u32 s{NONCE}, 0')
    a.e(f's_cbranch_scc1 {lno}')
    a.e(f's_cmp_gt_u32 s28, {SPIN_MAX}')
    a.e(f's_cbranch_scc1 {lno}')
    a.e('v_mov_b32 v15, 0')
    a.e('buffer_load_dword v125, v15, s[48:51], 0 offen sc1')
    a.e('s_waitcnt vmcnt(0)')
    a.e(f's_branch {lnz}')
    a.label(lno)
    lnf = a.newlabel('nkvf')
    a.e('s_cmp_lg_u32 s16, 0')
    a.e(f's_cbranch_scc1 {lnf}')
    a.e('s_cmp_ge_u32 s18, 2')
    a.e(f's_cbranch_scc1 {lnf}')
    a.e('s_lshl_b32 s21, s17, 1')
    a.e('s_add_u32 s21, s21, s18')
    a.e('s_lshl_b32 s21, s21, 7')
    a.e(f's_add_u32 s21, s21, {F_KV}')
    a.e(f'v_mov_b32 v16, s{NONCE}')
    a.e('v_mov_b32 v17, 0')
    a.e('s_mov_b64 exec, 1')
    a.e('buffer_store_dword v16, v17, s[8:11], s21 offen sc1')
    a.e('s_mov_b64 exec, -1')
    a.label(lnf)
    def reads2(i):
        s = i & 1
        vb = VBE if i % 2 == 0 else VBO
        a.e(f'ds_read_b64_tr_b16 {vr(AF[s],2)}, v{VTR} offset:{i*4096}')
        a.e(f'ds_read_b64_tr_b16 {vr(AF[s]+2,2)}, v{VTR} offset:{i*4096+512}')
        for tg in range(4):
            a.e(f'ds_read_b128 {vr(BF[s]+4*tg,4)}, v{vb} offset:{tg*16384+(i>>1)*2048}')
    reads2(0)
    for i in range(8):
        s = i & 1
        if i < 7:
            reads2(i + 1)
            a.e('s_waitcnt lgkmcnt(6)')
        else:
            a.e('s_waitcnt lgkmcnt(0)')
        for tg in range(4): mf(ACC+4*tg, AF[s], BF[s]+4*tg)
        mf(TCS, AF[s], ONES)
    dg.stamp()
    a.e('s_barrier')
    CSB = 33792
    a.e(f's_lshl_b32 s28, s{FG}, 13')
    a.e(f's_lshl_b32 s29, s{KH}, 12')
    a.e('s_add_u32 s28, s28, s29')
    a.e('v_add_u32 v9, s28, v5')
    a.e('s_nop 4')
    for tg in range(4): a.e(f'ds_write_b128 v9, {vr(ACC+4*tg,4)} offset:{tg*1024}')
    a.e('s_lshl_b32 s28, s16, 10')
    a.e('v_add_u32 v9, s28, v5')
    a.e(f'ds_write_b128 v9, {vr(TCS,4)} offset:{CSB}')
    a.e('s_waitcnt lgkmcnt(0)')
    a.e('s_barrier')
    a.e(f's_lshl_b32 s28, s{FG}, 13')
    a.e(f's_lshl_b32 s29, s{KH}, 11')
    a.e('s_add_u32 s28, s28, s29')
    a.e('v_add_u32 v9, s28, v5')
    for u in range(2):
        a.e(f'ds_read_b128 {vr(40+8*u,4)}, v9 offset:{u*1024}')
        a.e(f'ds_read_b128 {vr(44+8*u,4)}, v9 offset:{4096+u*1024}')
    a.e(f's_lshl_b32 s29, s{KH}, 9')
    a.e(f's_add_u32 s29, s29, {ST}')
    a.e('v_lshlrev_b32 v10, 3, v6')
    a.e('v_add_u32 v10, s29, v10')
    for u in range(2):
        a.e(f'ds_read_b64 {vr(56+4*u,2)}, v10 offset:{u*256}')
        a.e(f'ds_read_b64 {vr(58+4*u,2)}, v10 offset:{u*256+128}')
    a.e(f's_lshl_b32 s29, s{FG}, 10')
    a.e('v_add_u32 v11, s29, v5')
    a.e(f'ds_read_b128 {vr(64,4)}, v11 offset:{CSB}')
    a.e(f'ds_read_b128 {vr(68,4)}, v11 offset:{CSB+4096}')
    a.e('s_lshl_b32 s28, s16, 10')
    a.e('s_add_u32 s28, s28, 65536')
    a.e('v_add_u32 v17, s28, v126')
    a.e('v_add_u32 v18, s28, v5')
    a.e('s_waitcnt lgkmcnt(0)')
    for r in range(4): a.e(f'v_add_f32 v{64+r}, v{64+r}, v{68+r}')
    for u in range(2): ln_stats(56+4*u, 72+u, 74+u)
    a.e('s_nop 0')
    for u in range(2):
        a.e(f'v_mul_f32 v{74+u}, s46, v{74+u}')
        for r in range(4):
            a.e(f'v_add_f32 v{40+8*u+r}, v{40+8*u+r}, v{44+8*u+r}')
            a.e(f'v_fma_f32 v{40+8*u+r}, -v{72+u}, v{64+r}, v{40+8*u+r}')
            a.e(f'v_mul_f32 v{40+8*u+r}, v{40+8*u+r}, v{74+u}')
        a.e(f'v_cvt_pk_bf16_f32 v{76+2*u}, v{40+8*u}, v{41+8*u}')
        a.e(f'v_cvt_pk_bf16_f32 v{77+2*u}, v{42+8*u}, v{43+8*u}')
        a.e(f'ds_write_b64 v17, {vr(76+2*u,2)} offset:{u*256}')
    a.e('s_waitcnt lgkmcnt(0)')
    a.e('ds_read_b128 v[4:7], v18')
    a.e('s_waitcnt lgkmcnt(0)')
    a.e('s_barrier')
    dg.stamp()
    a.e('v_lshlrev_b32 v2, 4, v1')
    lw0 = a.newlabel('nw0')
    a.e('s_cmp_lg_u32 s16, 0')
    a.e(f's_cbranch_scc1 {lw0}')
    a.e('v_lshlrev_b32 v13, 7, v1')
    a.e(f's_mov_b32 s21, {F_KV}')
    poll_nonce(a, 12, 13, 8, 21, 64, 22)
    a.label(lw0)
    a.e('s_barrier')
    dg.stamp()
    vm = VM(a)
    a.e('s_lshl_b32 s20, s17, 1')
    a.e('s_lshr_b32 s21, s16, 2')
    a.e('s_add_u32 s20, s20, s21')
    a.e('s_lshl_b32 s20, s20, 5')
    a.e('s_lshl_b32 s21, s18, 2')
    a.e('s_add_u32 s20, s20, s21')
    a.e('s_and_b32 s21, s16, 3')
    a.e('s_add_u32 s20, s20, s21')
    a.e('s_lshl_b32 s20, s20, 10')
    srd(a, 12, 4, 5, KV_BYTES, add=WS_KV)
    a.e('s_lshl_b32 s63, s16, 12')
    def kvload(n):
        j, i = n // 4, n % 4
        if n == 16:
            a.e('s_and_b32 s63, s16, 1')
            a.e('s_lshl_b32 s63, s63, 10')
            a.e(f's_add_u32 s63, s63, {128*1024}')
            a.e('s_mov_b32 m0, s63')
            a.e('s_nop 0')
            vm.op('buffer_load_dwordx4 v2, s[12:15], s63 offen sc1 lds', 'kv16')
            return
        if i == 0:
            a.e('s_mov_b32 m0, s63')
            a.e('s_nop 0')
        vm.op(f'buffer_load_dwordx4 v2, s[12:15], s63 offen offset:{i*1024} sc1 lds', f'kv{n}')
        if i == 3: a.e('s_add_u32 s63, s63, 32768')
    for n in range(4): kvload(n)
    a.e('s_lshl_b32 s44, s2, 3')
    a.e('s_add_u32 s44, s44, s16')
    a.e('s_mul_i32 s56, s16, 3072')
    a.e(f's_add_u32 s56, s56, {PRE_LDS}')
    a.e('v_and_b32 v89, 15, v1')
    a.e('v_lshrrev_b32 v92, 2, v89')
    a.e('v_and_b32 v93, 3, v1')
    a.e('v_lshrrev_b32 v94, 4, v1')
    a.e('s_movk_i32 s45, 3584')
    a.e('v_lshrrev_b32 v95, 1, v1')
    a.e('v_mul_lo_u32 v95, v95, s45')
    a.e('v_and_b32 v96, 1, v1')
    a.e('v_lshl_add_u32 v96, v96, 4, v95')
    a.e('v_lshrrev_b32 v95, 2, v1')
    a.e('v_lshlrev_b32 v95, 10, v95')
    a.e('v_lshl_add_u32 v97, v93, 4, v95')
    a.e('v_lshl_add_u32 v95, v94, 3, v92')
    a.e('v_lshlrev_b32 v95, 5, v95')
    a.e('v_lshl_add_u32 v95, v93, 3, v95')
    a.e('v_add_u32 v98, s56, v95')
    a.e('v_lshrrev_b32 v101, 1, v94')
    a.e('v_and_b32 v95, 1, v94')
    a.e('v_lshlrev_b32 v95, 5, v95')
    a.e('v_lshl_add_u32 v95, v93, 3, v95')
    a.e('v_lshl_add_u32 v95, v92, 6, v95')
    a.e('v_add_u32 v95, s56, v95')
    a.e('v_lshl_add_u32 v99, v101, 9, v95')
    a.e('v_lshl_add_u32 v100, v101, 8, v95')
    lwo = f'L_prewo_{name}'; lpd = f'L_predone_{name}'
    a.e('s_cmp_ge_u32 s44, 1792')
    a.e(f's_cbranch_scc1 {lwo}')
    a.e('s_and_b32 s46, s44, 15')
    a.e(f's_mul_i32 s46, s46, {32*3584}')
    a.e('s_lshr_b32 s47, s44, 4')
    a.e('s_lshl_b32 s47, s47, 5')
    a.e('s_add_u32 s57, s46, s47')
    a.e(f's_mul_hi_u32 s46, s44, {(2**32 + 111)//112}')
    a.e('s_mul_i32 s47, s46, 112')
    a.e('s_sub_u32 s47, s44, s47')
    a.e('s_lshl_b32 s47, s47, 14')
    a.e('s_lshl_b32 s46, s46, 6')
    a.e('s_add_u32 s58, s46, s47')
    srd(a, 48, 36, 37, D*F*2)
    srd(a, 52, 38, 39, D*F*2)
    srd(a, 24, 40, 41, F*D*2)
    a.e('s_lshl_b32 s45, s44, 10')
    a.e(f's_add_u32 s46, s45, {WS_WU}')
    a.e(f's_add_u32 s47, s45, {WS_WD}')
    a.e(f's_add_u32 s45, s45, {WS_WG}')
    a.e('s_mov_b32 s59, 0')
    a.e('s_mov_b32 s31, s57')
    a.e(f's_branch {lpd}')
    a.label(lwo)
    a.e('s_sub_u32 s44, s44, 1792')
    a.e('s_lshl_b32 s44, s44, 1')
    a.e('s_and_b32 s46, s44, 31')
    a.e('s_lshl_b32 s46, s46, 14')
    a.e('s_lshr_b32 s47, s44, 5')
    a.e('s_lshl_b32 s47, s47, 6')
    a.e('s_add_u32 s57, s46, s47')
    a.e('s_add_u32 s58, s57, 16384')
    srd(a, 48, 32, 33, D*D*2)
    srd(a, 52, 32, 33, D*D*2)
    srd(a, 24, 32, 33, D*D*2)
    a.e('s_lshl_b32 s45, s44, 10')
    a.e(f's_add_u32 s45, s45, {WS_WO}')
    a.e('s_add_u32 s46, s45, 1024')
    a.e('s_mov_b32 s59, 1')
    a.e('s_mov_b32 s31, s58')
    a.e('v_mov_b32 v96, v97')
    a.label(lpd)
    def pre_dma(fr):
        vo, sd, so = [(96, 48, 57), (96, 52, 31), (97, 24, 58)][fr]
        a.e(f's_add_u32 m0, s56, {fr*1024}')
        a.e('s_nop 0')
        vm.op(f'buffer_load_dwordx4 v{vo}, s[{sd}:{sd+3}], s{so} offen lds', 'pre')
    def pre_store():
        lb = a.newlabel('pb'); le = a.newlabel('pe')
        a.e('s_cmp_eq_u32 s59, 1')
        a.e(f's_cbranch_scc1 {lb}')
        for fr, (va, d2) in enumerate([(98, 128), (98, 128), (99, 256)]):
            a.e(f'ds_read_b64_tr_b16 {vr(104+4*fr,2)}, v{va} offset:{fr*1024}')
            a.e(f'ds_read_b64_tr_b16 {vr(106+4*fr,2)}, v{va} offset:{fr*1024+d2}')
        for r in range(4):
            a.e(f'v_mov_b32 v{116+r}, 0x3f803f80')
        a.e('s_waitcnt lgkmcnt(0)')
        for fr in range(3):
            a.e(f'buffer_store_dwordx4 {vr(104+4*fr,4)}, v2, s[8:11], s{45+fr} offen sc1')
        a.e('v_mfma_f32_16x16x32_bf16 v[120:123], v[104:107], v[116:119], 0')
        a.e('v_mfma_f32_16x16x32_bf16 v[124:127], v[108:111], v[116:119], 0')
        a.e('v_lshrrev_b32 v116, 4, v1')
        a.e('v_lshlrev_b32 v116, 4, v116')
        a.e('s_lshl_b32 s60, s44, 6')
        a.e(f's_add_u32 s61, s60, {WS_CSU}')
        a.e(f's_add_u32 s60, s60, {WS_CSG}')
        a.e('s_mov_b32 exec_lo, 0x00010001')
        a.e('s_mov_b32 exec_hi, 0x00010001')
        a.e('s_nop 4')
        a.e('buffer_store_dwordx4 v[120:123], v116, s[8:11], s60 offen sc1')
        a.e('buffer_store_dwordx4 v[124:127], v116, s[8:11], s61 offen sc1')
        a.e('s_mov_b64 exec, -1')
        a.e(f's_branch {le}')
        a.label(lb)
        for fr in range(2):
            a.e(f'ds_read_b64_tr_b16 {vr(104+4*fr,2)}, v100 offset:{fr*1024}')
            a.e(f'ds_read_b64_tr_b16 {vr(106+4*fr,2)}, v100 offset:{fr*1024+512}')
        a.e('s_waitcnt lgkmcnt(0)')
        for fr in range(2):
            a.e(f'buffer_store_dwordx4 {vr(104+4*fr,4)}, v2, s[8:11], s{45+fr} offen sc1')
        a.label(le)
    VK, VV = 3, 88
    a.e(f'v_mov_b32 v{VK}, v2')
    a.e('v_and_b32 v89, 31, v1')
    a.e('v_lshrrev_b32 v92, 5, v1')
    a.e('v_lshlrev_b32 v92, 8, v92')
    a.e('v_lshl_add_u32 v92, v89, 4, v92')
    a.e('v_mov_b32 v93, 512')
    a.e('v_cmp_gt_u32 vcc, 16, v89')
    a.e('s_nop 1')
    a.e('v_cndmask_b32 v92, v93, v92, vcc')
    a.e(f'v_add_u32 v{VV}, 1024, v92')
    Q = 4; KR = [8, 12]; VR = [[16, 20], [24, 28]]; P = [32, 36]; SB = [40, 56]; O = 72
    for i in range(16): a.e(f'v_mov_b32 v{O+i}, 0')
    for i in range(4):
        a.e(f'v_mov_b32 v{P[1]+i}, 0')
        a.e(f'v_mov_b32 v{VR[1][1]+i}, 0')
    a.e('s_and_b32 s23, s19, 15')
    a.e('s_mul_i32 s23, s23, 7')
    a.e('s_add_u32 s23, s23, s16')
    a.e('s_lshl_b32 s34, s23, 14')
    a.e(f's_add_u32 s35, s34, {WS_WU}')
    a.e(f's_add_u32 s34, s34, {WS_WG}')
    a.e('s_mul_i32 s28, s18, 224')
    a.e('s_mul_i32 s29, s16, 14')
    a.e('s_add_u32 s28, s28, s29')
    a.e('s_lshl_b32 s28, s28, 10')
    a.e(f's_add_u32 s28, s28, {WS_WD}')
    a.e(f's_add_u32 s29, s28, {112*1024}')
    a.e('s_cmp_eq_u32 s16, 7')
    a.e('s_cselect_b32 s34, s28, s34')
    a.e('s_cselect_b32 s35, s29, s35')
    a.e('s_lshl_b32 s30, s18, 6')
    a.e('s_lshl_b32 s21, s16, 2')
    a.e('s_add_u32 s30, s30, s21')
    a.e('s_lshl_b32 s30, s30, 10')
    a.e(f's_add_u32 s30, s30, {WS_WO}')
    def wload(i):
        if i < 8:
            ct, ks = i >> 2, i & 3
            if i == 4: a.e(f's_add_u32 s30, s30, {32*1024}')
            a.e(f'buffer_load_dwordx4 {vr(224+4*i,4)}, v2, s[8:11], s30 offen offset:{ks*1024} sc1')
        else:
            k = i - 8
            sb = 34 + (k & 1)
            q = (k >> 1) & 3
            a.e(f'buffer_load_dwordx4 {vr(96+4*k,4)}, v2, s[8:11], s{sb} offen offset:{q*1024} sc1')
            if q == 3: a.e(f's_add_u32 s{sb}, s{sb}, 4096')
    sched = 'E0 E1 PV1 LV1 E2 E3 C0 C1 E4 E5 W1 QK LV0 LK X E6 E7 C2 C3 E8 E9 PV0 E10 E11 E12 E13 E14 E15 C4 C5 C6 C7'
    def tile(p, base, hook=None):
        s_cur, s_nxt = SB[p], SB[1-p]
        o1 = (base+1)*KV_TILE; o2 = (base+2)*KV_TILE
        for op in sched.split():
            if op == 'LV0': a.e(f'ds_read_b128 {vr(VR[1-p][0],4)}, v{VV} offset:{o1}')
            elif op == 'LV1': a.e(f'ds_read_b128 {vr(VR[1-p][1],4)}, v{VV} offset:{o1+528}')
            elif op == 'LK': a.e(f'ds_read_b128 {vr(KR[p],4)}, v{VK} offset:{o2}')
            elif op[0] == 'W': a.e('s_waitcnt lgkmcnt(%s)' % op[1:])
            elif op == 'QK': a.e(f'v_mfma_f32_32x32x16_bf16 {vr(s_nxt,16)}, {vr(KR[1-p],4)}, {vr(Q,4)}, 0')
            elif op == 'X':
                if hook: hook()
            elif op[0] == 'E':
                i = int(op[1:]); a.e(f'v_exp_f32 v{s_cur+i}, v{s_cur+i}')
            elif op[0] == 'C':
                i = int(op[1:]); a.e(f'v_cvt_pk_bf16_f32 v{P[i//4] + i % 4}, v{s_cur+2*i}, v{s_cur+2*i+1}')
            elif op == 'PV0': a.e(f'v_mfma_f32_32x32x16_bf16 {vr(O,16)}, {vr(VR[p][0],4)}, {vr(P[0],4)}, {vr(O,16)}')
            elif op == 'PV1': a.e(f'v_mfma_f32_32x32x16_bf16 {vr(O,16)}, {vr(VR[1-p][1],4)}, {vr(P[1],4)}, {vr(O,16)}')
    def bump():
        a.e(f'v_add_u32 v{VK}, {16*KV_TILE}, v{VK}')
        a.e(f'v_add_u32 v{VV}, {16*KV_TILE}, v{VV}')
    vm.wait('kv3')
    a.e('s_barrier')
    dg.stamp()
    a.e(f'ds_read_b128 {vr(KR[0],4)}, v{VK} offset:0')
    a.e(f'ds_read_b128 {vr(VR[0][0],4)}, v{VV} offset:0')
    a.e(f'ds_read_b128 {vr(VR[0][1],4)}, v{VV} offset:528')
    a.e(f'ds_read_b128 {vr(KR[1],4)}, v{VK} offset:{KV_TILE}')
    a.e('s_waitcnt lgkmcnt(3)')
    a.e(f'v_mfma_f32_32x32x16_bf16 {vr(SB[0],16)}, {vr(KR[0],4)}, {vr(Q,4)}, 0')
    a.e('s_nop 15')
    T_KV, T_PST, T_FLG, T_POLL, T_CHK = 13, 15, 26, 30, 34
    wl = [0]
    def hook_for(t):
        def h():
            if t < 7:
                kvload(4 + 2*t)
                if 5 + 2*t <= 16: kvload(5 + 2*t)
            if 7 <= t < 10: pre_dma(t - 7)
            if t >= T_CHK:
                n = 2 if t < T_CHK + 10 else 1
                for k in range(n):
                    wload(wl[0]); wl[0] += 1
        return h
    def prefill(i):
        if i == 0:
            for r in range(4): a.e(f'v_mov_b32 v{112+r}, -1')
            a.e(f's_add_u32 s24, s20, {WS_O}')
            a.e('s_lshr_b32 s25, s17, 1')
            a.e('s_mul_i32 s25, s25, 448')
            a.e('s_and_b32 s26, s19, 15')
            a.e('s_mul_i32 s26, s26, 7')
            a.e('s_add_u32 s26, s26, s16')
            a.e('s_add_u32 s25, s25, s26')
            a.e('s_lshl_b32 s25, s25, 10')
            a.e(f's_add_u32 s25, s25, {WS_ACT}')
            a.e(f's_mov_b32 s26, {112*1024}')
            a.e('s_cmp_eq_u32 s16, 7')
            a.e('s_cselect_b32 s25, s24, s25')
            a.e('s_cselect_b32 s26, 0, s26')
            vm.op('buffer_store_dwordx4 v[112:115], v2, s[8:11], s24 offen sc1', 'fill')
        elif i <= 4:
            vm.op('buffer_store_dwordx4 v[112:115], v2, s[8:11], s25 offen sc1', 'fill')
            a.e('s_add_u32 s25, s25, s26')
        else:
            a.e('s_lshl_b32 s24, s17, 6')
            a.e('s_lshl_b32 s25, s16, 3')
            a.e('s_add_u32 s24, s24, s25')
            a.e('s_lshl_b32 s24, s24, 3')
            a.e('s_lshl_b32 s25, s18, 14')
            a.e('s_add_u32 s24, s24, s25')
            a.e(f's_add_u32 s24, s24, {WS_ST}')
            a.e('v_lshlrev_b32 v116, 3, v1')
            a.e('s_mov_b64 exec, 0xff')
            vm.op('buffer_store_dwordx2 v[112:113], v116, s[8:11], s24 offen sc1', 'fill')
            a.e('s_mov_b64 exec, -1')
    def wave0_only(body):
        lab = a.newlabel('w0')
        a.e('s_cmp_lg_u32 s16, 0')
        a.e(f's_cbranch_scc1 {lab}')
        body()
        a.label(lab)
    for t in range(64):
        if t in (16, 32, 48): bump()
        if V.get('attn_stamps') and t in (T_KV, T_PST, T_FLG, T_CHK): dg.stamp()
        if t == T_KV:
            vm.wait('kv16')
            a.e('s_barrier')
        if t == T_PST:
            vm.wait('pre')
            pre_store()
        if t == T_FLG:
            vm.wait_all()
            a.e('s_barrier')
            def f():
                a.e(f'v_mov_b32 v89, s{NONCE}')
                a.e('v_mov_b32 v90, 0')
                a.e('s_lshl_b32 s21, s19, 7')
                a.e(f's_add_u32 s21, s21, {F_PRE}')
                a.e('s_mov_b64 exec, 1')
                a.e('buffer_store_dword v89, v90, s[8:11], s21 offen sc1')
                a.e('s_mov_b64 exec, -1')
            wave0_only(f)
        def pre_poll_issue():
            a.e('v_lshlrev_b32 v89, 7, v1')
            a.e(f's_mov_b32 s21, {F_PRE}')
            for i in range(4):
                a.e(f's_add_u32 s23, s21, {i*8192}')
                a.e(f'buffer_load_dword v{92+i}, v89, s[8:11], s23 offen sc1')
        if t == T_POLL:
            wave0_only(pre_poll_issue)
        if t == T_CHK:
            def f():
                lp = a.newlabel('pp'); ld = a.newlabel('pd')
                a.e('s_mov_b32 s22, 0')
                a.label(lp)
                a.e('s_add_u32 s22, s22, 1')
                a.e('s_waitcnt vmcnt(0)')
                for i in range(4):
                    a.e(f'v_xor_b32 v{92+i}, s{NONCE}, v{92+i}')
                a.e('v_or3_b32 v92, v92, v93, v94')
                a.e('v_or_b32 v92, v92, v95')
                a.e('v_cmp_ne_u32 vcc, 0, v92')
                a.e(f's_cmp_gt_u32 s22, {SPIN_MAX}')
                a.e(f's_cbranch_scc1 {ld}')
                a.e(f's_cbranch_vccz {ld}')
                pre_poll_issue()
                a.e(f's_branch {lp}')
                a.label(ld)
            wave0_only(f)
            a.e('s_barrier')
        if V.get('attn_stamps') and t in (T_KV, T_PST, T_FLG, T_CHK): dg.stamp()
        tile(t & 1, t % 16, hook=hook_for(t))
    assert wl[0] == 40
    a.e('s_nop 1')
    a.e(f'v_mfma_f32_32x32x16_bf16 {vr(O,16)}, {vr(VR[1][1],4)}, {vr(P[1],4)}, {vr(O,16)}')
    dg.stamp()
    a.e('v_lshrrev_b32 v40, 3, v1')
    a.e('v_and_b32 v41, 7, v1')
    a.e('s_lshl_b32 s25, s17, 6')
    a.e('s_lshl_b32 s21, s16, 3')
    a.e('s_add_u32 s25, s25, s21')
    a.e('v_add_u32 v42, s25, v41')
    a.e('v_lshlrev_b32 v43, 10, v42')
    a.e('v_lshl_add_u32 v43, v40, 4, v43')
    a.e('s_lshl_b32 s21, s18, 7')
    a.e('v_add_u32 v43, s21, v43')
    srd(a, 12, 6, 7, S*D*2)
    a.e('buffer_load_dwordx4 v[8:11], v43, s[12:15], 0 offen')
    a.e('s_nop 7')
    a.e(f'v_rcp_f32 v{O+8}, v{O+8}')
    a.e('s_nop 0')
    for i in range(8): a.e(f'v_mul_f32 v{O+i}, v{O+i}, v{O+8}')
    for i in range(4): a.e(f'v_cvt_pk_bf16_f32 v{P[0]+i}, v{O+2*i}, v{O+2*i+1}')
    a.e(f's_add_u32 s21, s20, {WS_O}')
    a.e(f'buffer_store_dwordx4 {vr(P[0],4)}, v2, s[8:11], s21 offen sc1')
    def publish(flag_base):
        a.e('s_waitcnt vmcnt(0) lgkmcnt(0)')
        a.e('s_barrier')
        lab = a.newlabel('nf')
        a.e('s_cmp_lg_u32 s16, 0')
        a.e(f's_cbranch_scc1 {lab}')
        a.e(f'v_mov_b32 v12, s{NONCE}')
        a.e('v_mov_b32 v13, 0')
        a.e('s_lshl_b32 s21, s19, 7')
        a.e(f's_add_u32 s21, s21, {flag_base}')
        a.e('s_mov_b64 exec, 1')
        a.e('buffer_store_dword v12, v13, s[8:11], s21 offen sc1')
        a.e('s_mov_b64 exec, -1')
        a.label(lab)
    publish(F_O)
    dg.stamp()
    a.e('s_lshl_b32 s21, s17, 3')
    a.e('s_add_u32 s21, s21, s16')
    a.e('s_lshl_b32 s21, s21, 7')
    a.e(f's_add_u32 s21, s21, {F_O}')
    a.e('v_mov_b32 v13, 0')
    poll_nonce(a, 12, 13, 8, 21, 1, 22)
    dg.stamp()
    a.e('s_lshl_b32 s21, s17, 6')
    a.e('s_lshl_b32 s22, s16, 2')
    a.e('s_add_u32 s21, s21, s22')
    a.e('s_lshl_b32 s21, s21, 10')
    a.e(f's_add_u32 s21, s21, {WS_O}')
    a.e(f's_add_u32 s23, s21, {32*1024}')
    for tt in range(2):
        for ks in range(4):
            a.e(f'buffer_load_dwordx4 {vr(16+16*tt+4*ks,4)}, v2, s[8:11], s{21 if tt == 0 else 23} offen offset:{ks*1024} sc1')
    a.e('s_waitcnt vmcnt(0)')
    TILE = {(0,0): 48, (0,1): 64, (1,0): 80, (1,1): 224}
    for ct in range(2):
        for ks in range(4):
            for tt in range(2):
                t = TILE[(ct, tt)]
                c = '0' if ks == 0 else vr(t, 16)
                a.e(f'v_mfma_f32_32x32x16_bf16 {vr(t,16)}, {vr(224+16*ct+4*ks,4)}, {vr(16+16*tt+4*ks,4)}, {c}')
    BS = 1152
    def reduce_and_final(tiles, res_regs, stamp=True):
        a.e(f's_mul_i32 s21, s16, {16*BS}')
        a.e('v_add_u32 v12, s21, v2')
        a.e('s_nop 7')
        a.e('s_nop 3')
        for ct in range(2):
            for tt in range(2):
                for m in range(4):
                    a.e(f'ds_write_b128 v12, {vr(tiles[(ct,tt)]+4*m,4)} offset:{((ct*2+tt)*4+m)*BS}')
        a.e('s_waitcnt lgkmcnt(0)')
        a.e('s_barrier')
        a.e('v_lshrrev_b32 v12, 3, v1')
        a.e('v_lshrrev_b32 v13, 2, v12')
        a.e('v_lshlrev_b32 v13, 3, v13')
        a.e('v_and_b32 v14, 3, v12')
        a.e('v_add_u32 v13, v13, v14')
        a.e('s_lshr_b32 s21, s16, 2')
        a.e('s_lshl_b32 s21, s21, 2')
        a.e('v_add_u32 v13, s21, v13')
        a.e(f'v_mul_u32_u24 v13, {BS}, v13')
        a.e('s_and_b32 s21, s16, 3')
        a.e('s_lshl_b32 s21, s21, 3')
        a.e('v_and_b32 v14, 7, v1')
        a.e('v_add_u32 v14, s21, v14')
        a.e('v_lshl_add_u32 v13, v14, 4, v13')
        a.e(f'v_add_u32 v14, {4*16*BS}, v13')
        for w in range(8):
            va, off = (13, w*16*BS) if w < 4 else (14, (w-4)*16*BS)
            a.e(f'ds_read_b128 {vr(16+8*w,4)}, v{va} offset:{off}')
            a.e(f'ds_read_b128 {vr(20+8*w,4)}, v{va} offset:{off+512}')
        for w in range(1, 8):
            a.e(f's_waitcnt lgkmcnt({max(0, 14 - 2*w)})')
            for r in range(8): a.e(f'v_add_f32 v{16+r}, v{16+r}, v{16+8*w+r}')
        for r in range(4):
            a.e(f'v_lshlrev_b32 v{80+2*r}, 16, v{res_regs+r}')
            a.e(f'v_and_b32 v{81+2*r}, 0xffff0000, v{res_regs+r}')
        for r in range(8): a.e(f'v_add_f32 v{16+r}, v{16+r}, v{80+r}')
    reduce_and_final(TILE, 8)
    dg.stamp()
    HR = 240
    for r in range(4): a.e(f'v_cvt_pk_bf16_f32 v{HR+r}, v{16+2*r}, v{17+2*r}')
    a.e('v_lshrrev_b32 v40, 3, v1')
    a.e('v_and_b32 v41, 7, v1')
    a.e('v_add_u32 v42, s25, v41')
    a.e('v_lshrrev_b32 v44, 4, v42')
    a.e('v_lshlrev_b32 v44, 14, v44')
    a.e('v_lshrrev_b32 v45, 2, v40')
    a.e('v_lshl_add_u32 v44, v45, 10, v44')
    a.e('v_and_b32 v45, 3, v40')
    a.e('v_lshlrev_b32 v45, 4, v45')
    a.e('v_and_b32 v46, 15, v42')
    a.e('v_add_u32 v45, v45, v46')
    a.e('v_lshl_add_u32 v44, v45, 4, v44')
    a.e('s_lshl_b32 s21, s18, 11')
    a.e(f's_add_u32 s21, s21, {WS_H}')
    a.e(f'buffer_store_dwordx4 {vr(HR,4)}, v44, s[8:11], s21 offen sc1')
    a.e('s_mov_b32 s31, 0x3f803f80')
    a.e('v_mov_b32 v28, 0')
    a.e('v_mov_b32 v29, 0')
    for r in range(4):
        a.e(f'v_dot2_f32_bf16 v28, v{HR+r}, s31, v28')
        a.e(f'v_dot2_f32_bf16 v29, v{HR+r}, v{HR+r}, v29')
    a.e('s_nop 2')
    a.e('v_add_f32_dpp v28, v28, v28 row_ror:8 row_mask:0xf bank_mask:0xf')
    a.e('v_add_f32_dpp v29, v29, v29 row_ror:8 row_mask:0xf bank_mask:0xf')
    a.e('s_nop 1')
    red_g_multi(a, [28, 29], [30, 31])
    a.e('v_lshlrev_b32 v45, 3, v42')
    a.e('s_lshl_b32 s21, s18, 14')
    a.e(f's_add_u32 s21, s21, {WS_ST}')
    a.e('s_mov_b64 exec, 0xff')
    a.e('buffer_store_dwordx2 v[28:29], v45, s[8:11], s21 offen sc1')
    a.e('s_mov_b64 exec, -1')
    publish(F_H)
    dg.stamp()
    a.e('s_lshr_b32 s22, s17, 1')
    a.e('v_lshlrev_b32 v13, 7, v1')
    a.e('s_cmp_eq_u32 s16, 7')
    a.e(f's_cbranch_scc1 L_w7_{name}')
    a.e('s_lshl_b32 s21, s22, 1')
    a.e('s_lshr_b32 s23, s16, 2')
    a.e('s_add_u32 s21, s21, s23')
    a.e('s_lshl_b32 s21, s21, 10')
    a.e(f's_add_u32 s21, s21, {F_H}')
    poll_nonce(a, 12, 13, 8, 21, 8, 23)
    dg.stamp()
    def gu_common_addr():
        a.e('v_add_u32 v3, 65536, v2')
        a.e('v_and_b32 v6, 15, v1')
        a.e('v_lshrrev_b32 v7, 4, v1')
        a.e('s_lshl_b32 s23, s22, 17')
        a.e('s_lshl_b32 s24, s16, 14')
        a.e('s_add_u32 s23, s23, s24')
        a.e(f's_add_u32 s23, s23, {WS_H}')
    gu_common_addr()
    A0 = 96; BF = 16
    GT = [48 + 4*j for j in range(8)]
    UT = [80 + 4*j for j in range(4)] + [224 + 4*j for j in range(4)]
    CT = 244
    def hdma():
        a.e('s_mov_b32 m0, s24')
        a.e('s_add_u32 s24, s24, 1024')
        a.e('buffer_load_dwordx4 v2, s[8:11], s23 offen sc1 lds')
        a.e('s_add_u32 s23, s23, 1024')
    vm2 = VM(a)
    def hd(ks):
        hdma(); vm2.mark(f'h{ks}')
    NH0 = V.get('NH0', 6)
    for ks in range(NH0): hd(ks)
    a.e('s_and_b32 s26, s19, 15')
    a.e('s_mul_i32 s26, s26, 7')
    a.e('s_add_u32 s26, s26, s16')
    a.e('v_lshlrev_b32 v8, 6, v6')
    a.e('v_lshl_add_u32 v8, v7, 4, v8')
    a.e('s_lshl_b32 s21, s26, 10')
    a.e(f's_add_u32 s27, s21, {WS_CSU}')
    a.e(f's_add_u32 s21, s21, {WS_CSG}')
    vm2.op(f'buffer_load_dwordx4 {vr(CT,4)}, v8, s[8:11], s21 offen sc1', 'cs')
    vm2.op(f'buffer_load_dwordx4 {vr(CT+4,4)}, v8, s[8:11], s27 offen sc1', 'cs')
    for j in range(8):
        for r in range(4):
            a.e(f'v_mov_b32 v{GT[j]+r}, 0'); a.e(f'v_mov_b32 v{UT[j]+r}, 0')
    def bread(j, ks):
        va = 2 if j < 4 else 3
        a.e(f'ds_read_b128 {vr(BF+4*j,4)}, v{va} offset:{(j%4)*16384 + ks*1024}')
    def wdload(i):
        sb = 28 + (i & 1)
        vm2.op(f'buffer_load_dwordx4 {vr(A0+4*i,4)}, v2, s[8:11], s{sb} offen sc1', f'wd{i}')
        a.e(f's_add_u32 s{sb}, s{sb}, 1024')
    vm2.wait('h1')
    a.e('s_barrier')
    dg.stamp()
    for j in range(8): bread(j, 0)
    hissued = NH0
    for ks in range(16):
        if ks % 2 == 1 and ks < 15:
            vm2.wait(f'h{min(ks+2, 15)}')
            a.e('s_barrier')
        for j in range(8):
            if j % 2 == 0:
                a.e(f's_waitcnt lgkmcnt({6 if ks < 15 else 6 - j})')
            a.e(f'v_mfma_f32_16x16x32_bf16 {vr(GT[j],4)}, {vr(A0+8*ks,4)}, {vr(BF+4*j,4)}, {vr(GT[j],4)}')
            a.e(f'v_mfma_f32_16x16x32_bf16 {vr(UT[j],4)}, {vr(A0+8*ks+4,4)}, {vr(BF+4*j,4)}, {vr(UT[j],4)}')
            if ks < 15: bread(j, ks + 1)
            if j == 1 and hissued < 16:
                hd(hissued); hissued += 1
            if ks >= 1 and j in (3, 6):
                i = 2*(ks-1) + (0 if j == 3 else 1)
                if i < 28: wdload(i)
    dg.stamp()
    STT = 131072
    a.e('v_lshlrev_b32 v9, 3, v6')
    a.e(f'v_add_u32 v9, {STT}, v9')
    for j in range(8): a.e(f'ds_read_b64 {vr(16+2*j,2)}, v9 offset:{j*128}')
    a.e('v_lshrrev_b32 v10, 1, v7')
    a.e('v_lshlrev_b32 v10, 5, v10')
    a.e('v_add_u32 v10, v10, v6')
    a.e('v_lshlrev_b32 v10, 4, v10')
    a.e('v_and_b32 v11, 1, v7')
    a.e('v_lshl_add_u32 v10, v11, 3, v10')
    a.e('s_mul_i32 s21, s22, 448')
    a.e('s_add_u32 s21, s21, s26')
    a.e('s_lshl_b32 s21, s21, 10')
    a.e(f's_add_u32 s21, s21, {WS_ACT}')
    for sh in (8, 4, 2, 1):
        for r in range(8):
            a.e(f'v_add_f32_dpp v{CT+r}, v{CT+r}, v{CT+r} row_ror:{sh} row_mask:0xf bank_mask:0xf')
    a.e('s_waitcnt lgkmcnt(0)')
    for j in range(8):
        mean, r2 = 16 + 2*j, 17 + 2*j
        g0, u0 = GT[j], UT[j]
        for r in range(4):
            a.e(f'v_fma_f32 v{g0+r}, -v{mean}, v{CT+r}, v{g0+r}')
            a.e(f'v_fma_f32 v{u0+r}, -v{mean}, v{CT+4+r}, v{u0+r}')
        for r in range(4):
            a.e(f'v_max_f32 v{g0+r}, 0, v{g0+r}')
            a.e(f'v_mul_f32 v{u0+r}, v{u0+r}, v{r2}')
        for r in range(4): a.e(f'v_mul_f32 v{g0+r}, v{g0+r}, v{u0+r}')
        a.e(f'v_cvt_pk_bf16_f32 v{32+2*j}, v{g0}, v{g0+1}')
        a.e(f'v_cvt_pk_bf16_f32 v{33+2*j}, v{g0+2}, v{g0+3}')
        a.e(f'buffer_store_dwordx2 {vr(32+2*j,2)}, v10, s[8:11], s21 offen offset:{(j&1)*256} sc1')
        if j & 1: a.e(f's_add_u32 s21, s21, {112*1024}')
    a.e(f's_branch L_gudone_{name}')
    a.label(f'L_w7_{name}')
    n_main = dg.n
    dg.n = n_main - 3 if diag else 0
    a.e('s_lshl_b32 s21, s22, 11')
    a.e(f's_add_u32 s21, s21, {F_H}')
    poll_nonce(a, 12, 13, 8, 21, 16, 23)
    dg.stamp()
    a.e('s_lshl_b32 s27, s22, 10')
    a.e(f's_add_u32 s27, s27, {WS_ST}')
    for c in range(8):
        a.e(f'buffer_load_dwordx4 {vr(16+4*c,4)}, v2, s[8:11], s27 offen sc1')
        if c < 7: a.e('s_add_u32 s27, s27, 16384')
    gu_common_addr()
    a.e(f's_mov_b32 s34, {f32bits(1.0/512)}')
    a.e(f's_mov_b32 s35, {f32bits(1e-5)}')
    for ks in range(16): hdma()
    a.e(f's_waitcnt vmcnt({14})')
    a.e('s_barrier')
    dg.stamp()
    for ks in range(1, 15, 2):
        need = min(ks + 2, 15)
        n_after = 15 - need
        a.e(f's_waitcnt vmcnt({n_after})' + (' lgkmcnt(0)' if ks == 13 else ''))
        a.e('s_barrier')
        if ks == 1:
            for c in range(1, 8):
                for r in range(4): a.e(f'v_add_f32 v{16+r}, v{16+r}, v{16+4*c+r}')
            for b in (16, 18):
                a.e(f'v_mul_f32 v{b}, s34, v{b}')
                a.e(f'v_mul_f32 v{b+1}, s34, v{b+1}')
                a.e(f'v_fma_f32 v{b+1}, -v{b}, v{b}, v{b+1}')
                a.e(f'v_max_f32 v{b+1}, 0, v{b+1}')
                a.e(f'v_add_f32 v{b+1}, s35, v{b+1}')
                a.e(f'v_rcp_f32 v{b+1}, v{b+1}')
            a.e(f'v_add_u32 v9, {STT}, v2')
            a.e('s_nop 0')
            a.e('ds_write_b128 v9, v[16:19]')
    dg.stamp()
    dg.n = n_main
    a.label(f'L_gudone_{name}')
    publish(F_A)
    dg.stamp()
    a.e('s_lshr_b32 s22, s17, 1')
    a.e('s_lshl_b32 s21, s22, 4')
    a.e('s_lshl_b32 s23, s16, 1')
    a.e('s_add_u32 s21, s21, s23')
    a.e('s_lshl_b32 s21, s21, 7')
    a.e(f's_add_u32 s21, s21, {F_A}')
    a.e('v_lshlrev_b32 v13, 7, v1')
    poll_nonce(a, 12, 13, 8, 21, 2, 23)
    dg.stamp()
    a.e('s_mul_i32 s21, s17, 224')
    a.e('s_mul_i32 s23, s16, 14')
    a.e('s_add_u32 s21, s21, s23')
    a.e('s_lshl_b32 s21, s21, 10')
    a.e(f's_add_u32 s21, s21, {WS_ACT}')
    a.e(f's_add_u32 s23, s21, {112*1024}')
    RING = [208, 216, 16, 24, 32, 40]
    vm3 = VM(a)
    def aload(kk):
        s = RING[kk % 6]
        vm3.op(f'buffer_load_dwordx4 {vr(s,4)}, v2, s[8:11], s21 offen sc1', f'a{kk}')
        vm3.op(f'buffer_load_dwordx4 {vr(s+4,4)}, v2, s[8:11], s23 offen sc1', f'a{kk}')
        a.e('s_add_u32 s21, s21, 1024')
        a.e('s_add_u32 s23, s23, 1024')
    a.e('s_mov_b32 s27, s21')
    for kk in range(6): aload(kk)
    retry = []
    DT = {(0,0): 48, (0,1): 64, (1,0): 80, (1,1): 224}
    for kk in range(14):
        vm3.wait(f'a{kk}')
        s = RING[kk % 6]
        for ct in range(2):
            for tt in range(2):
                t = DT[(ct, tt)]
                c = '0' if kk == 0 else vr(t, 16)
                a.e(f'v_mfma_f32_32x32x16_bf16 {vr(t,16)}, {vr(A0+8*kk+4*ct,4)}, {vr(s+4*tt,4)}, {c}')
        if kk + 6 < 14: aload(kk + 6)
    dg.stamp()
    reduce_and_final(DT, HR)
    for r in range(4): a.e(f'v_cvt_pk_bf16_f32 v{24+r}, v{16+2*r}, v{17+2*r}')
    a.e('v_lshrrev_b32 v40, 3, v1')
    a.e('v_and_b32 v41, 7, v1')
    a.e('v_add_u32 v42, s25, v41')
    a.e('v_lshlrev_b32 v43, 10, v42')
    a.e('v_lshl_add_u32 v43, v40, 4, v43')
    a.e('s_lshl_b32 s21, s18, 7')
    a.e('v_add_u32 v43, s21, v43')
    srd(a, 12, 42, 43, S*D*2)
    a.e('buffer_store_dwordx4 v[24:27], v43, s[12:15], 0 offen')
    dg.finish(100 if diag else 0)
    a.e('s_waitcnt vmcnt(0)')
    a.label(f'L_exit_{name}')
    a.e('s_endpgm')
    for lrt, lok, sreg, kk in retry:
        a.label(lrt)
        a.e(f's_add_u32 s24, s27, {kk*1024}')
        a.e(f's_add_u32 s26, s24, {112*1024}')
        def rl():
            a.e(f'buffer_load_dwordx4 {vr(sreg,4)}, v2, s[8:11], s24 offen sc1')
            a.e(f'buffer_load_dwordx4 {vr(sreg+4,4)}, v2, s[8:11], s26 offen sc1')
        spin_until_valid(a, rl, range(sreg, sreg+8), 14, 22)
        a.e(f's_branch {lok}')
    return name, 256, 102
```

```python
import sys
from common import *
from gen_k1 import gen_k1, K1_LDS
from gen_k2 import gen_k2, K2_LDS
from gen_gemm64 import gen_gemm64, G64_LDS
from gen_k4 import gen_k4, K4_LDS
from gen_fused import gen_fused, FUSED_LDS
from gen_mono import gen_mono, MONO_LDS
HEADER = open('sequential_preLN__grouped_kv_mqa__glu_gated_reglu__prompt.s.ref').read().split('; Override launch')[0]
def build(diag, path):
    a = Asm()
    a(HEADER.rstrip('\n'))
    a(f'; @launch kernel=qkv_kernel grid=(256,1,1) block=(512,1,1) lds={K1_LDS}')
    a(f'; @launch kernel=attn_kernel grid=(256,1,1) block=(512,1,1) lds={K2_LDS}')
    a(f'; @launch kernel=wo_kernel grid=(256,1,1) block=(512,1,1) lds={G64_LDS}')
    a(f'; @launch kernel=gu_kernel grid=(256,1,1) block=(512,1,1) lds={K4_LDS}')
    a(f'; @launch kernel=down_kernel grid=(256,1,1) block=(512,1,1) lds={G64_LDS}')
    a('.amdgcn_target "amdgcn-amd-amdhsa--gfx950"')
    a('.text')
    ds = [gen_k1(a, diag, kidx=0), gen_k2(a, diag, kidx=1), gen_gemm64(a, 'wo', diag, kidx=2), gen_k4(a, diag, kidx=3), gen_gemm64(a, 'down', diag, kidx=4)]
    a('.section .rodata,"a"')
    for n, nv, ns in ds:
        a(kernel_desc(n, nv, ns))
    open(path, 'w').write(a.text())
if __name__ == '__main__':
    build(True, 'full_diag.s')
    build(False, 'full.s')

def build_fused(diag, path):
    a = Asm()
    a(HEADER.rstrip('\n'))
    a(f'; @launch kernel=qkv_kernel grid=(256,1,1) block=(512,1,1) lds={K1_LDS}')
    a(f'; @launch kernel=fused_kernel grid=(256,1,1) block=(512,1,1) lds={FUSED_LDS}')
    a('.amdgcn_target "amdgcn-amd-amdhsa--gfx950"')
    a('.text')
    ds = [gen_k1(a, diag, kidx=0), gen_fused(a, diag, kidx=1)]
    a('.section .rodata,"a"')
    for n, nv, ns in ds:
        a(kernel_desc(n, nv, ns))
    open(path, 'w').write(a.text())
if __name__ == '__main__':
    build_fused(True, 'fused_diag.s')
    build_fused(False, 'fused.s')

def build_mono(diag, path, V=None):
    a = Asm()
    a(HEADER.rstrip('\n'))
    a(f'; @launch kernel=mono_kernel grid=(256,1,1) block=(512,1,1) lds={MONO_LDS}')
    a('.amdgcn_target "amdgcn-amd-amdhsa--gfx950"')
    a('.text')
    ds = [gen_mono(a, diag, kidx=0, V=V)]
    a('.section .rodata,"a"')
    for n, nv, ns in ds:
        a(kernel_desc(n, nv, ns))
    open(path, 'w').write(a.text())
if __name__ == '__main__':
    build_mono(True, 'mono_diag.s')
    build_mono(True, 'mono_diag2.s', V={'attn_stamps': 1})
    build_mono(False, 'mono.s')
```
